```python
import torch

def _softmax(x, axis=-1):
    return torch.softmax(x, dim=axis)
def _gelu(x):
    return torch.nn.functional.gelu(x, approximate="tanh")
def _silu(x):
    return torch.nn.functional.silu(x)
def _sigmoid(x):
    return torch.sigmoid(x)
def _layernorm(x, axis=-1, eps=1e-5):
    m = x.mean(dim=axis, keepdim=True)
    v = x.var(dim=axis, keepdim=True, unbiased=False)
    return (x - m) / torch.sqrt(v + eps)
def _scatter_add(tgt, idx, src, axis=0):
    return tgt.clone().index_add_(axis, idx, src)
def _segment_sum(src, seg, n):
    out = torch.zeros((n,) + src.shape[1:], dtype=src.dtype)
    return out.index_add_(0, seg, src)
def _pad(x, pw):
    flat = tuple(v for pair in reversed(pw) for v in pair)
    return torch.nn.functional.pad(x, flat)

kernel_name = 'parallel_sum__sliding_block__dense_activation_relu__prompt'

def setup_inputs():

    _w = (lambda a: (lambda t: t.to(torch.bfloat16) if t.is_floating_point() else t)(torch.as_tensor(a)))
    def _A_setup():
        B, S, D = 1, 2048, 512
        return {
            "x": _w((lambda *s: torch.randn(*s, dtype=torch.bfloat16) * 0.05)(B, S, D)),
            "wqkv": _w((lambda *s: torch.randn(*s, dtype=torch.bfloat16) * 0.05)(D, 3 * D)),
            "wo": _w((lambda *s: torch.randn(*s, dtype=torch.bfloat16) * 0.1)(D, D)),
        }
    _A_in = _A_setup()

    def _B_setup():
        B, S, D, Dff = 1, 2048, 512, 1792
        return {
            "x": _w((lambda *s: torch.randn(*s, dtype=torch.bfloat16) * 0.05)(B, S, D)),
            "w1": _w((lambda *s: torch.randn(*s, dtype=torch.bfloat16) * 0.05)(D, Dff)),
            "w2": _w((lambda *s: torch.randn(*s, dtype=torch.bfloat16) * 0.05)(Dff, D)),
        }
    _B_in = _B_setup()

    return {
        "A_x": _A_in["x"],
        "A_wqkv": _A_in["wqkv"],
        "A_wo": _A_in["wo"],
        "B_x": _B_in["x"],
        "B_w1": _B_in["w1"],
        "B_w2": _B_in["w2"],
    }

def reference(A_x, A_wqkv, A_wo, B_x, B_w1, B_w2):
    def _A_ref(x, wqkv, wo):
        B, S, D = x.shape
        H = 32; Dh = D // H; W = 256
        qkv = (lambda x, *d: x.permute(*d))((x @ wqkv).reshape(B, S, 3, H, Dh), 2, 0, 3, 1, 4)
        q, k, v = qkv[0], qkv[1], qkv[2]
        scores = torch.einsum("bhqd,bhkd->bhqk", q, k) * (Dh ** -0.5)
        idx = torch.arange(S)
        mask = (idx[:, None] - idx[None, :] >= 0) & (idx[:, None] - idx[None, :] < W)
        scores = torch.where(mask[None, None], scores, -1e9)
        p = _softmax(scores, axis=-1)
        o = torch.einsum("bhqk,bhkd->bhqd", p, v)
        return (lambda x, *d: x.permute(*d))(o, 0, 2, 1, 3).reshape(B, S, D) @ wo

    def _B_ref(x, w1, w2):
        h = torch.einsum("bsd,df->bsf", x, w1)
        zero = torch.zeros_like(h)
        h = torch.maximum(h, zero)
        return torch.einsum("bsf,fd->bsd", h, w2)

    x = A_x
    xn = _layernorm(x, axis=-1)
    return x + _A_ref(xn, A_wqkv, A_wo) + _B_ref(xn, B_w1, B_w2)
```

```python
import re
TRANS = ("v_exp_f32", "v_log_f32", "v_rcp_f32", "v_rsq_f32", "v_sqrt_f32", "v_sin_f32", "v_cos_f32")
def regs(tok):
    tok = tok.strip().lstrip('-')
    if tok.startswith('abs(') or tok.startswith('|'):
        tok = tok.strip('|').replace('abs(', '').rstrip(')')
    m = re.fullmatch(r'([vsa])\[(\d+):(\d+)\]', tok)
    if m: return {(m.group(1), i) for i in range(int(m.group(2)), int(m.group(3)) + 1)}
    m = re.fullmatch(r'([vsa])(\d+)', tok)
    if m: return {(m.group(1), int(m.group(2)))}
    if tok == 'vcc': return {('s', 'vcc')}
    if tok == 'exec': return {('s', 'exec')}
    if tok == 'm0': return {('s', 'm0')}
    return set()
def split_ops(s):
    out, depth, cur = [], 0, ''
    for ch in s:
        if ch in '[(': depth += 1
        if ch in '])': depth -= 1
        if ch == ',' and depth == 0: out.append(cur.strip()); cur = ''
        else: cur += ch
    if cur.strip(): out.append(cur.strip())
    return out
class I:
    def __init__(self, text):
        self.text = text
        t = text.split(';')[0].strip()
        self.mn = t.split()[0] if t else ''
        rest = t[len(self.mn):].strip()
        ops = split_ops(rest)
        if ops:
            last = ops[-1].split()
            self.mods = last[1:]
            ops[-1] = last[0] if last else ''
        else: self.mods = []
        self.ops = ops
        mn = self.mn
        self.kind = 'other'; self.w = set(); self.r = set(); self.srcC = set(); self.srcAB = set(); self.passes = 0
        R = lambda i: regs(ops[i]) if i < len(ops) else set()
        if mn.startswith('v_mfma'):
            self.kind = 'mfma'; self.w = R(0); self.srcAB = R(1) | R(2); self.srcC = R(3); self.r = self.srcAB | self.srcC
            self.passes = 8 if '32x32' in mn else 4
        elif mn.startswith('v_cmp'):
            self.kind = 'valu'; self.w = R(0); self.r = R(1) | R(2)
        elif mn.startswith('v_readfirstlane') or mn.startswith('v_readlane'):
            self.kind = 'valu'; self.w = R(0); self.r = R(1) | R(2); self.lane = True
        elif mn.startswith('v_permlane'):
            self.kind = 'valu'; self.w = R(0) | R(1); self.r = R(0) | R(1)
        elif mn.startswith('v_'):
            self.kind = 'valu'; self.w = R(0)
            st = 1
            if '_co_' in mn: self.w |= R(1); st = 2
            for i in range(st, len(ops)): self.r |= R(i)
            if mn.startswith('v_fmac') or mn.startswith('v_dot2c'): self.r |= R(0)
            if mn.startswith('v_cndmask') and len(ops) == 3: self.r |= {('s', 'vcc')}
        elif mn.startswith('ds_read') or (mn.startswith('ds_') and '_rtn' in mn) or mn.startswith('ds_bpermute') or mn.startswith('ds_swizzle'):
            self.kind = 'ds'; self.w = R(0)
            for i in range(1, len(ops)): self.r |= R(i)
        elif mn.startswith('ds_'):
            self.kind = 'ds'
            for i in range(len(ops)): self.r |= R(i)
        elif mn.startswith('buffer_load') or mn.startswith('buffer_atomic'):
            self.kind = 'vmem'
            if 'lds' in self.mods:
                for i in range(len(ops)): self.r |= R(i)
                self.r |= {('s', 'm0')}; self.dma = True
            else:
                self.w = R(0)
                for i in range(1, len(ops)): self.r |= R(i)
        elif mn.startswith('buffer_store'):
            self.kind = 'vmem'
            for i in range(len(ops)): self.r |= R(i)
            if 'x4' in mn or 'x3' in mn: self.wide = R(0)
        elif mn.startswith('global_load'):
            self.kind = 'vmem'; self.w = R(0)
            for i in range(1, len(ops)): self.r |= R(i)
        elif mn.startswith('global_store'):
            self.kind = 'vmem'
            for i in range(len(ops)): self.r |= R(i)
            if 'x4' in mn or 'x3' in mn: self.wide = R(1)
        elif mn.startswith('s_'):
            self.kind = 'salu'
            if not (mn.startswith('s_cmp') or mn.startswith('s_cbranch') or mn.startswith('s_branch') or mn in ('s_waitcnt', 's_nop', 's_barrier', 's_endpgm', 's_sleep', 's_setprio') or mn.startswith('s_bitcmp')):
                self.w = R(0)
                for i in range(1, len(ops)): self.r |= R(i)
            else:
                for i in range(len(ops)): self.r |= R(i)
        self.states = 1
        if mn == 's_nop': self.states = int(ops[0], 0) + 1
    def isv(self): return self.kind == 'valu'
def need(p, c):
    n = 0
    vw = {x for x in p.w if x[0] in 'va'}
    sw = {x for x in p.w if x[0] == 's'}
    if p.kind == 'valu':
        if c.kind == 'mfma' and vw & c.r: n = max(n, 2)
        if c.kind == 'vmem' and sw & c.r: n = max(n, 5)
        if c.kind == 'valu' and sw & c.r: n = max(n, 4 if getattr(c, 'lane', False) else 2)
        if c.kind == 'valu' and getattr(c, 'lane', False) and vw & c.r: n = max(n, 1)
        if c.mn.startswith('v_permlane') and vw & c.r: n = max(n, 2)
        if c.kind == 'valu' and ('dpp' in c.mn or any(m.startswith(('row_', 'quad_perm')) for m in c.mods)) and vw & c.r: n = max(n, 2)
        if p.mn.startswith(TRANS) and c.kind in ('valu',) and not c.mn.startswith(TRANS) and vw & c.r: n = max(n, 1)
        if p.mn.startswith(TRANS) and c.kind in ('mfma',) and vw & c.r: n = max(n, 2)
        if ('s', 'exec') in p.w and c.kind == 'mfma': n = max(n, 4)
        if ('s', 'vcc') in p.w and c.mn.startswith('s_cbranch_vcc'): n = max(n, 0)
        if c.kind == 'salu' and sw & c.r: n = max(n, 1)
    if p.kind == 'mfma':
        big = {8: 12, 4: 8}[p.passes]
        if c.kind == 'mfma':
            if p.w & c.srcAB: n = max(n, big)
            if p.w & c.srcC and not (p.w == c.srcC and p.passes == c.passes): n = max(n, {8: 10, 4: 6}[p.passes])
            if p.w & c.w and not (p.w == c.w and p.passes == c.passes): n = max(n, big)
        elif c.kind in ('valu', 'vmem', 'ds'):
            if p.w & (c.r | c.w): n = max(n, big)
            if c.kind == 'valu' and p.srcC & c.w: n = max(n, {8: 7, 4: 3}[p.passes])
            if c.kind in ('vmem', 'ds') and p.srcC & c.w: n = max(n, {8: 7, 4: 3}[p.passes])
    if p.kind == 'salu' and ('s', 'm0') in p.w and getattr(c, 'dma', False): n = max(n, 1)
    if hasattr(p, 'wide') and c.kind == 'valu' and p.wide & c.w: n = max(n, 2)
    if hasattr(p, 'wide') and c.kind != 'valu' and p.wide & c.w: n = max(n, 1)
    return n
def fix(lines):
    out = []; hist = []
    added = 0
    for ln in lines:
        t = ln.split(';')[0].strip()
        if not t or t.endswith(':') or t.startswith('.'):
            out.append(ln); continue
        c = I(t)
        dist = 0; req = 0
        for p in reversed(hist):
            k = need(p, c)
            if k > dist: req = max(req, k - dist)
            dist += p.states
            if dist >= 20: break
        while req > 0:
            k = min(req, 16)
            out.append(f"    s_nop {k-1}"); hist.append(I(f"s_nop {k-1}")); req -= k; added += 1
        out.append(ln); hist.append(c)
        if len(hist) > 40: hist = hist[-40:]
    return out, added
```

```python
import sys, argparse
import hz
KNAME = "parallel_sum__sliding_block__dense_activation_relu__prompt_kernel"

HO_OFF = 0x000000
QF_OFF = 0x900000
KF_OFF = 0xB00000
VF_OFF = 0xD00000
FL_OFF = 0xF00000
FL_T = 64 * 32 * 128
ST_OFF = 0x1000000
WS_USED = 0x1040000
W0, W1 = 0, 65536
MISC = 155648
L_ST, L_CS, L_ONES, L_CNT = MISC, MISC + 1024, MISC + 2048, MISC + 3072
LDS_TOTAL = 163840
RING = [W0, W1, W0 + 16384, W1 + 16384]
L_K, L_V = W0 + 32768, W1 + 32768
pX, pQ, pWO, pW1, pW2, pOUT, pDBG, pWS = 4, 6, 8, 12, 14, 16, 18, 20
SX, SQ, SW1, SW2, SWO, SOUT, SWS, SDBG = 24, 28, 32, 36, 40, 44, 48, 52
sWAVE, sRB, sC, sJJ, sRT3, sCT, sW4 = 56, 57, 58, 59, 60, 61, 62
sT = list(range(64, 80))
sN0, sN1 = 80, 81
sSPIN = 82
sSTAMP = 84
SPIN_MAX = 60000

class G:
    def __init__(self, diag=False, stop=None):
        self.L = []; self.diag = diag; self.stop = stop; self.nlab = 0; self.nst = 0
    def __call__(self, s):
        for ln in s.strip('\n').split('\n'):
            ln = ln.strip()
            if ln: self.L.append(ln if ln.endswith(':') else "    " + ln)
    def lab(self, base):
        self.nlab += 1; return f"L_{base}_{self.nlab}"
    def stamp(self, i):
        if self.diag:
            self(f"s_memrealtime s[{100}:{101}]\ns_waitcnt lgkmcnt(0)\ns_mov_b32 s{sSTAMP+i}, s100")
    def dump_stamps(self, vt):
        if self.diag:
            self(f"s_lshl_b32 s{sT[0]}, s2, 3\ns_add_u32 s{sT[0]}, s{sT[0]}, s{sWAVE}\ns_lshl_b32 s{sT[0]}, s{sT[0]}, 6\ns_add_u32 s{sT[0]}, s{sT[0]}, {ST_OFF}")
            self("s_mov_b64 exec, 1")
            self(f"v_mov_b32 v{vt+4}, 0")
            for q in range(4):
                for j in range(4): self(f"v_mov_b32 v{vt+j}, s{sSTAMP+4*q+j}")
                self(f"buffer_store_dwordx4 v[{vt}:{vt+3}], v{vt+4}, s[{SWS}:{SWS+3}], s{sT[0]} offen offset:{16*q}")
                self("s_waitcnt vmcnt(0)")
            self("s_mov_b64 exec, -1")

def vr(a, n): return f"v[{a}:{a+n-1}]" if n > 1 else f"v{a}"
def sr(a, n=4): return f"s[{a}:{a+n-1}]"
def mfma32(d, a, b, c=None):
    cs = vr(d, 16) if c is None else (c if isinstance(c, str) else vr(c, 16))
    return f"v_mfma_f32_32x32x16_bf16 {vr(d,16)}, {vr(a,4)}, {vr(b,4)}, {cs}"
def mfma16(d, a, b, c=None):
    cs = vr(d, 4) if c is None else (c if isinstance(c, str) else vr(c, 4))
    return f"v_mfma_f32_16x16x32_bf16 {vr(d,4)}, {vr(a,4)}, {vr(b,4)}, {cs}"
def srd(g, s, p, nbytes):
    g(f"s_mov_b32 s{s}, s{p}\ns_and_b32 s{s+1}, s{p+1}, 0xffff\ns_mov_b32 s{s+2}, {nbytes}\ns_mov_b32 s{s+3}, 0x20000")

def dma(g, vaddr, S, sbase, soff_imm, slds, lds_imm, flags=""):
    g(f"s_add_u32 m0, s{slds}, {lds_imm}")
    g(f"s_add_u32 s{sT[15]}, s{sbase}, {soff_imm}")
    g(f"buffer_load_dwordx4 v{vaddr}, {sr(S)}, s{sT[15]} offen {flags} lds")

def poll(g, vaddr, vd, execmask_s, name):
    lp, done = g.lab(name + "_p"), g.lab(name + "_d")
    g(f"s_mov_b64 exec, {execmask_s}")
    g(f"s_mov_b32 s{sSPIN}, 0")
    g(f"{lp}:")
    g(f"buffer_load_dwordx2 {vr(vd,2)}, v{vaddr}, {sr(SWS)}, 0 offen sc1")
    g(f"s_add_u32 s{sSPIN}, s{sSPIN}, 1")
    g("s_waitcnt vmcnt(0)")
    g(f"v_cmp_ne_u64 vcc, s[{sN0}:{sN1}], {vr(vd,2)}")
    g(f"s_cmp_gt_u32 s{sSPIN}, {SPIN_MAX}")
    g(f"s_cbranch_scc1 {done}")
    g(f"s_cbranch_vccnz {lp}")
    g(f"{done}:")
    g("s_mov_b64 exec, -1")

def get_nonce(g, vd, vz):
    lp, done = g.lab("non_p"), g.lab("non_d")
    g(f"s_mov_b32 s{sSPIN}, 0")
    g(f"{lp}:")
    g(f"buffer_load_dwordx2 {vr(vd,2)}, v{vz}, {sr(SDBG)}, 0 offen sc1")
    g(f"s_add_u32 s{sSPIN}, s{sSPIN}, 1")
    g("s_waitcnt vmcnt(0)")
    g(f"v_readfirstlane_b32 s{sN0}, v{vd}\nv_readfirstlane_b32 s{sN1}, v{vd+1}")
    g(f"s_cmp_gt_u32 s{sSPIN}, {SPIN_MAX}")
    g(f"s_cbranch_scc1 {done}")
    g(f"s_cmp_eq_u32 s{sN0}, 0\ns_cbranch_scc1 {lp}")
    g(f"{done}:")

def set_flag(g, sflag, vd, vz):
    g(f"v_mov_b32 v{vd}, s{sN0}\nv_mov_b32 v{vd+1}, s{sN1}")
    g("s_mov_b64 exec, 1")
    g(f"buffer_store_dwordx2 {vr(vd,2)}, v{vz}, {sr(SWS)}, s{sflag} offen sc1")
    g("s_mov_b64 exec, -1")

def pipeline(g, steps, D, first_barrier_done=True):
    n = len(steps)
    issued = []
    def emit_reads_list(k):
        return list(steps[k]['reads'])
    for k in range(min(D, n)):
        if steps[k].get('newblock') and k > 0:
            g("s_waitcnt lgkmcnt(0)\ns_barrier")
        for r in steps[k]['reads']: g(r)
    for i in range(n):
        nxt = i + D
        rd = emit_reads_list(nxt) if nxt < n else []
        for p in steps[i].get('pre', []): g(p)
        if nxt < n and steps[nxt].get('newblock'):
            g("s_waitcnt lgkmcnt(0)")
            for p in steps[nxt].get('prebar', []): g(p)
            g("s_barrier")
        else:
            later = sum(len(steps[k]['reads']) for k in range(i + 1, min(nxt, n)))
            g(f"s_waitcnt lgkmcnt({min(later,15)})")
        mf = steps[i]['mf']
        per = -(-len(rd) // len(mf)) if mf else 0
        for j, m in enumerate(mf):
            g(m)
            for r in rd[j*per:(j+1)*per]: g(r)
        if not mf:
            for r in rd: g(r)

def build(diag=False, stop=None):
    g = G(diag, stop)
    g(f"""
    s_cmp_ge_u32 s2, 256
    s_cbranch_scc1 L_END
    s_load_dwordx16 s[4:19], s[0:1], 0
    s_load_dwordx2 s[20:21], s[0:1], 64
    v_lshrrev_b32 v1, 6, v0
    v_and_b32 v0, 63, v0
    v_readfirstlane_b32 s{sWAVE}, v1
    s_and_b32 s{sT[0]}, s2, 7
    s_lshr_b32 s{sT[1]}, s2, 3
    s_and_b32 s{sRB}, s{sT[0]}, 1
    s_lshl_b32 s{sRB}, s{sRB}, 3
    s_and_b32 s{sT[2]}, s{sT[1]}, 7
    s_add_u32 s{sRB}, s{sRB}, s{sT[2]}
    s_lshr_b32 s{sC}, s{sT[0]}, 1
    s_lshl_b32 s{sC}, s{sC}, 2
    s_lshr_b32 s{sT[2]}, s{sT[1]}, 3
    s_add_u32 s{sC}, s{sC}, s{sT[2]}
    s_lshr_b32 s{sJJ}, s{sC}, 1
    s_lshl_b32 s{sRT3}, s{sT[0]}, 2
    s_and_b32 s{sT[2]}, s{sT[1]}, 3
    s_add_u32 s{sRT3}, s{sRT3}, s{sT[2]}
    s_lshr_b32 s{sCT}, s{sT[1]}, 2
    s_and_b32 s{sW4}, s{sWAVE}, 3
    """)
    if diag:
        for i in range(16): g(f"s_mov_b32 s{sSTAMP+i}, 0")
        g(f"s_memrealtime s[100:101]")
    g(f"s_cmp_ge_u32 s{sWAVE}, 4\ns_cbranch_scc1 L_H")
    build_M(g)
    g("L_H:")
    build_H(g)
    g("L_END:")
    return g

def tr_addr(g, vd, vt, kind):
    g(f"v_lshrrev_b32 v{vd}, 5, v0\nv_lshlrev_b32 v{vd}, 10, v{vd}")
    g(f"v_bfe_u32 v{vt}, v0, 2, 2\nv_lshl_add_u32 v{vd}, v{vt}, 7, v{vd}")
    g(f"v_bfe_u32 v{vt}, v0, 3, 1\nv_lshl_add_u32 v{vd}, v{vt}, 6, v{vd}")
    if kind == 1:
        sh = (5, 4, 3)
    else:
        sh = (4, 5, 3)
    g(f"v_bfe_u32 v{vt}, v0, 4, 1\nv_lshl_add_u32 v{vd}, v{vt}, {sh[0]}, v{vd}")
    g(f"v_bfe_u32 v{vt}, v0, 0, 1\nv_lshl_add_u32 v{vd}, v{vt}, {sh[1]}, v{vd}")
    g(f"v_bfe_u32 v{vt}, v0, 1, 1\nv_lshl_add_u32 v{vd}, v{vt}, {sh[2]}, v{vd}")

def wdma_addr(g, vd, vt, ld):
    g(f"v_bfe_u32 v{vt}, v0, 4, 1\nv_lshlrev_b32 v{vt}, 2, v{vt}\nv_and_b32 v{vd}, 7, v0\nv_xor_b32 v{vd}, v{vd}, v{vt}\nv_lshlrev_b32 v{vd}, 4, v{vd}")
    g(f"v_lshrrev_b32 v{vt}, 3, v0\nv_mul_u32_u24 v{vt}, {ld}, v{vt}\nv_add_u32 v{vd}, v{vd}, v{vt}")

def fcols(g, sA, sB):
    g(f"""
    s_and_b32 s{sT[0]}, s{sC}, 3
    s_lshl_b32 s{sT[0]}, s{sT[0]}, 2
    s_mul_i32 s{sT[1]}, s{sJJ}, 448
    s_lshr_b32 s{sA}, 0x3140, s{sT[0]}
    s_and_b32 s{sA}, s{sA}, 15
    s_lshl_b32 s{sA}, s{sA}, 6
    s_add_u32 s{sA}, s{sA}, s{sT[1]}
    s_lshr_b32 s{sB}, 0x6073, s{sT[0]}
    s_and_b32 s{sB}, s{sB}, 15
    s_lshl_b32 s{sB}, s{sB}, 6
    s_add_u32 s{sB}, s{sB}, s{sT[1]}
    s_sub_u32 s{sB}, s{sB}, 64
    """)

KORDER = [0,1,2,3,8,9,10,11,16,17,18,19,20,21,22,23] + [4,5,6,7,12,13,14,15,24,25,26,27]

def build_M(g):
    XF = 128
    A = [48, 64, 80, 96, 112]
    WF = 24
    XA = [2, 3, 4, 5]
    WA0 = [6, 7]; WA1 = [8, 9]; WAV = 10
    vCS, vST, vL16, vLV, vZ, vR, vRQ = 11, 12, 13, 14, 15, 16, 17
    vT0, vT1 = 18, 19
    B4 = 20
    sQK, sV, sHa, sHb, sFQ, sQS, sFA, sFB, sUA = sT[4], sT[5], sT[6], sT[7], sT[8], sT[9], sT[10], sT[11], sT[12]
    g(f"v_and_b32 v{vT0}, 31, v0\ns_lshl_b32 s{sT[0]}, s{sW4}, 5\nv_add_u32 v{vT0}, s{sT[0]}, v{vT0}")
    g(f"v_lshlrev_b32 v{vST}, 3, v{vT0}\nv_add_u32 v{vST}, {L_ST}, v{vST}")
    g(f"v_lshlrev_b32 v{vT0}, 7, v{vT0}")
    g(f"v_lshrrev_b32 v{vT1}, 5, v0\nv_bfe_u32 v{XA[0]}, v0, 1, 3\nv_xor_b32 v{vT1}, v{vT1}, v{XA[0]}")
    g(f"v_lshl_add_u32 v{XA[0]}, v{vT1}, 4, v{vT0}")
    for s in range(1, 4): g(f"v_xor_b32 v{XA[s]}, {32*s}, v{XA[0]}")
    tr_addr(g, WA0[0], vT0, 1)
    g(f"v_xor_b32 v{WA0[1]}, 64, v{WA0[0]}\nv_add_u32 v{WA1[0]}, {W1}, v{WA0[0]}\nv_add_u32 v{WA1[1]}, {W1}, v{WA0[1]}")
    g(f"s_and_b32 s{sT[0]}, s{sC}, 1\ns_lshl_b32 s{sT[0]}, s{sT[0]}, 6\nv_xor_b32 v{WAV}, s{sT[0]}, v{WA1[0]}")
    g(f"v_and_b32 v{vCS}, 0x13, v0\nv_bfe_u32 v{vT0}, v0, 2, 1\nv_lshl_add_u32 v{vCS}, v{vT0}, 3, v{vCS}\nv_bfe_u32 v{vT0}, v0, 3, 1\nv_lshl_add_u32 v{vCS}, v{vT0}, 2, v{vCS}")
    g(f"v_lshlrev_b32 v{vCS}, 2, v{vCS}\nv_add_u32 v{vCS}, {L_CS}, v{vCS}")
    g(f"v_lshlrev_b32 v{vL16}, 4, v0")
    g(f"v_and_b32 v{vLV}, 31, v0\nv_lshlrev_b32 v{vLV}, 5, v{vLV}\nv_lshrrev_b32 v{vT0}, 5, v0\nv_lshl_add_u32 v{vLV}, v{vT0}, 4, v{vLV}")
    g(f"v_mov_b32 v{vZ}, 0")
    for j in range(4): g(f"v_mov_b32 v{B4+j}, 0")
    for a in A[:3]:
        for j in range(16): g(f"v_mov_b32 v{a+j}, 0")
    lskip = g.lab("init")
    g(f"s_cmp_lg_u32 s{sWAVE}, 0\ns_cbranch_scc1 {lskip}")
    for j in range(4): g(f"v_mov_b32 v{WF+j}, 0x3f803f80")
    g(f"v_add_u32 v{vT0}, {L_ONES}, v{vL16}\nds_write_b128 v{vT0}, {vr(WF,4)}\nv_mov_b32 v{vT0}, {L_CNT}\nds_write_b32 v{vT0}, v{vZ}")
    g(f"{lskip}:")
    g("s_waitcnt lgkmcnt(0)")
    if g.diag: g(f"s_mov_b32 s{sSTAMP}, s100")
    srd(g, SWS, pWS, WS_USED); srd(g, SDBG, pDBG, 256); srd(g, SW2, pW2, 1792*1024); srd(g, SWO, pWO, 512*1024)
    ln = g.lab("non")
    g(f"s_or_b32 s{sT[0]}, s2, s{sWAVE}\ns_cmp_lg_u32 s{sT[0]}, 0\ns_cbranch_scc1 {ln}")
    g(f"s_memrealtime s[{sN0}:{sN1}]\ns_waitcnt lgkmcnt(0)\ns_or_b32 s{sN0}, s{sN0}, 1\ns_xor_b32 s{sN1}, s{sN1}, 0x5a3c96e1")
    g(f"v_mov_b32 v{vT0}, s{sN0}\nv_mov_b32 v{vT1}, s{sN1}\ns_mov_b64 exec, 1")
    g(f"buffer_store_dwordx2 {vr(vT0,2)}, v{vZ}, {sr(SDBG)}, 0 offen sc1\ns_mov_b64 exec, -1")
    g(f"{ln}:")
    srd(g, SX, pX, 2048*1024); srd(g, SOUT, pOUT, 2048*1024)
    g(f"""
    s_lshl_b32 s{sT[0]}, s{sRB}, 2
    s_add_u32 s{sT[0]}, s{sT[0]}, s{sW4}          ; RT
    s_and_b32 s{sT[1]}, s{sC}, 1
    s_lshl_b32 s{sQK}, s{sT[1]}, 21
    s_add_u32 s{sQK}, s{sQK}, {QF_OFF}
    s_lshl_b32 s{sT[2]}, s{sJJ}, 18
    s_add_u32 s{sQK}, s{sQK}, s{sT[2]}
    s_lshl_b32 s{sT[2]}, s{sT[0]}, 10
    s_add_u32 s{sQK}, s{sQK}, s{sT[2]}
    s_lshl_b32 s{sV}, s{sC}, 17
    s_add_u32 s{sV}, s{sV}, {VF_OFF}
    s_add_u32 s{sV}, s{sV}, s{sT[2]}
    s_cmp_eq_u32 s{sT[1]}, 0
    s_cselect_b32 s{sQS}, 0x3eb8aa3b, 1.0
    s_lshl_b32 s{sFQ}, s{sT[0]}, 5
    s_add_u32 s{sFQ}, s{sFQ}, s{sC}
    s_lshl_b32 s{sFQ}, s{sFQ}, 7
    s_add_u32 s{sFQ}, s{sFQ}, {FL_OFF}
    s_mul_i32 s{sT[3]}, s{sT[0]}, {144*1024}
    """)
    fcols(g, sFA, sFB)
    g(f"""
    s_lshl_b32 s{sHa}, s{sFA}, 5
    s_add_u32 s{sHa}, s{sHa}, s{sT[3]}
    s_lshl_b32 s{sHb}, s{sFB}, 5
    s_add_u32 s{sHb}, s{sHb}, s{sT[3]}
    s_and_b32 s{sT[0]}, s{sC}, 3
    s_cmp_eq_u32 s{sT[0]}, 2
    s_cselect_b32 s{sUA}, 64, 0
    """)
    g("s_barrier")
    g.stamp(1)
    steps = []
    for ks in range(32):
        c, s = ks // 4, ks % 4
        slot = (c & 3) * 16384
        buf = WF + 12 * (ks & 1)
        rd = [f"ds_read_b128 {vr(XF+4*ks,4)}, v{XA[s]} offset:{slot}"]
        for u, (va, off) in enumerate(((WA1[0], 0), (WA1[1], 0), (WAV, 8192))):
            for q in range(2):
                rd.append(f"ds_read_b64_tr_b16 {vr(buf+4*u+2*q,2)}, v{va} offset:{slot+off+(16*s+4*q)*128}")
        mf = [mfma32(A[u], buf+4*u, XF+4*ks) for u in range(3)]
        steps.append(dict(reads=rd, mf=mf, newblock=(s == 0)))
    pipeline(g, steps, 1)
    g(f"buffer_load_dwordx2 {vr(vT0,2)}, v{vZ}, {sr(SDBG)}, 0 offen sc1")
    g("s_waitcnt lgkmcnt(0)\ns_barrier")
    g.stamp(2)
    def epilogue(accs, cs_offs, scales, relu, stores):
        A4 = [WF+16, WF+20]
        for t in A4:
            for j in range(1, 4): g(f"v_mov_b32 v{t+j}, 0")
        for i, a in enumerate(accs):
            t = A4[i & 1]
            g(f"ds_read_b32 v{t}, v{vCS} offset:{cs_offs[i]}")
            g("s_waitcnt lgkmcnt(0)")
            g(mfma32(a, t, B4))
        for i, a in enumerate(accs):
            for j in range(16): g(f"v_mul_f32 v{a+j}, v{scales[i]}, v{a+j}")
            for j in range(8): g(f"v_cvt_pk_bf16_f32 v{a+j}, v{a+2*j}, v{a+2*j+1}")
            if relu:
                for j in range(8): g(f"v_pk_max_i16 v{a+j}, v{a+j}, 0")
            for s in range(2):
                va, sb, imm = stores[i][s]
                g(f"s_add_u32 s{sT[15]}, s{sb}, {imm}")
                g(f"buffer_store_dwordx4 {vr(a+4*s,4)}, v{va}, {sr(SWS)}, s{sT[15]} offen sc1")
    g(f"ds_read_b64 {vr(vR,2)}, v{vST}\ns_waitcnt lgkmcnt(0)")
    g(f"v_cmp_gt_u32 vcc, 32, v0\nv_cndmask_b32 v{B4}, 0, v{vR}, vcc\nv_mov_b32 v{vR}, v{vRQ}\nv_mul_f32 v{vRQ}, s{sQS}, v{vR}")
    g(f"s_and_b32 s{sT[0]}, s{sC}, 1\ns_lshl_b32 s{sT[0]}, s{sT[0]}, 7\nv_add_u32 v{WAV}, s{sT[0]}, v{vCS}")
    A4 = [WF+16, WF+20]
    for t in A4:
        for j in range(1, 4): g(f"v_mov_b32 v{t+j}, 0")
    g(f"ds_read_b32 v{A4[0]}, v{vCS} offset:0\nds_read_b32 v{A4[1]}, v{vCS} offset:128\nds_read_b32 v{WF}, v{WAV} offset:256")
    for j in range(1, 4): g(f"v_mov_b32 v{WF+j}, 0")
    g("s_waitcnt lgkmcnt(0)")
    g(mfma32(A[0], A4[0], B4)); g(mfma32(A[1], A4[1], B4)); g(mfma32(A[2], WF, B4))
    for j in range(16): g(f"v_mov_b32 v{A[3]+j}, 0\nv_mov_b32 v{A[4]+j}, 0")
    def finish(a, scale, relu, st):
        for j in range(16): g(f"v_mul_f32 v{a+j}, v{scale}, v{a+j}")
        for j in range(8): g(f"v_cvt_pk_bf16_f32 v{a+j}, v{a+2*j}, v{a+2*j+1}")
        if relu:
            for j in range(8): g(f"v_pk_max_i16 v{a+j}, v{a+j}, 0")
        for s in range(2):
            va, sb, imm = st[s]
            g(f"s_add_u32 s{sT[15]}, s{sb}, {imm}")
            g(f"buffer_store_dwordx4 {vr(a+4*s,4)}, v{va}, {sr(SWS)}, s{sT[15]} offen sc1")
    finish(A[0], vRQ, False, [(vL16, sQK, 0), (vL16, sQK, 65536)])
    finish(A[1], vRQ, False, [(vL16, sQK, 131072), (vL16, sQK, 196608)])
    finish(A[2], vR, False, [(vLV, sV, 0), (vLV, sV, 65536)])
    g.stamp(3)
    def fsteps(accs, slot0, wa0, wa1, nunits, first_newblock):
        st = []
        for ks in range(32):
            e, s = ks // 8, ks % 8
            wa = wa1 if (e & 1) else wa0
            slot = (slot0 + (e >> 1)) * 16384
            buf = WF + 8 * (ks % 3)
            rd = []
            for u in range(nunits):
                for q in range(2):
                    rd.append(f"ds_read_b64_tr_b16 {vr(buf+4*u+2*q,2)}, v{wa[u]} offset:{slot+(16*s+4*q)*128}")
            mf = [mfma32(accs[u], buf+4*u, XF+4*ks) for u in range(nunits)]
            st.append(dict(reads=rd, mf=mf, newblock=(ks == 16 and first_newblock)))
        return st
    st = fsteps([A[3], A[4]], 0, WA0, WA1, 2, True)
    def flag_code(sflag_imm, check_nonce):
        c = ["s_waitcnt vmcnt(0)"]
        return c
    pre = []
    g2 = G(); g2.nlab = 1000
    g2("s_waitcnt vmcnt(0)")
    g2(f"v_readfirstlane_b32 s{sN0}, v{vT0}\nv_readfirstlane_b32 s{sN1}, v{vT1}")
    lok = g2.lab("nok")
    g2(f"s_cmp_lg_u32 s{sN0}, 0\ns_cbranch_scc1 {lok}")
    get_nonce(g2, vT0, vZ)
    g2(f"{lok}:")
    set_flag(g2, sFQ, vT0, vZ)
    st[10]['pre'] = [x.strip() for x in g2.L]
    pipeline(g, st, 2)
    g("s_barrier")
    g.stamp(4)
    for t in A4:
        for j in range(1, 4): g(f"v_mov_b32 v{t+j}, 0")
    g(f"ds_read_b32 v{A4[0]}, v{vCS} offset:512\nds_read_b32 v{A4[1]}, v{vCS} offset:640\ns_waitcnt lgkmcnt(0)")
    g(mfma32(A[3], A4[0], B4)); g(mfma32(A[4], A4[1], B4))
    for j in range(16): g(f"v_mov_b32 v{A[0]+j}, 0\nv_mov_b32 v{A[1]+j}, 0")
    g(f"v_xor_b32 v{WA0[0]}, s{sUA}, v{WA0[0]}\nv_xor_b32 v{WA1[0]}, s{sUA}, v{WA1[0]}")
    finish(A[3], vR, True, [(vL16, sHa, 0), (vL16, sHa, 1024)])
    finish(A[4], vR, True, [(vL16, sHa, 2048), (vL16, sHa, 3072)])
    g.stamp(5)
    g3 = G(); g3("s_waitcnt vmcnt(0)"); g3(f"s_add_u32 s{sT[14]}, s{sFQ}, {FL_T}"); set_flag(g3, sT[14], vT0, vZ)
    hapre = [x.strip() for x in g3.L]
    l1, lj = g.lab("fb1"), g.lab("fbj")
    g(f"s_and_b32 s{sT[0]}, s{sC}, 3\ns_cmp_eq_u32 s{sT[0]}, 1\ns_cbranch_scc1 {l1}\ns_cmp_eq_u32 s{sT[0]}, 2\ns_cbranch_scc1 {l1}")
    st = fsteps([A[0], A[1]], 2, WA0, WA1, 2, False); st[10]['pre'] = hapre
    pipeline(g, st, 2)
    g("s_barrier")
    for t in A4:
        for j in range(1, 4): g(f"v_mov_b32 v{t+j}, 0")
    g(f"ds_read_b32 v{A4[0]}, v{vCS} offset:768\nds_read_b32 v{A4[1]}, v{vCS} offset:896\ns_waitcnt lgkmcnt(0)")
    g(mfma32(A[0], A4[0], B4)); g(mfma32(A[1], A4[1], B4))
    finish(A[0], vR, True, [(vL16, sHb, 0), (vL16, sHb, 1024)])
    finish(A[1], vR, True, [(vL16, sHb, 2048), (vL16, sHb, 3072)])
    g(f"s_branch {lj}")
    g(f"{l1}:")
    g("s_nop 7\ns_nop 7")
    st = fsteps([A[0]], 2, WA0, WA1, 1, False); st[20]['pre'] = hapre
    pipeline(g, st, 2)
    g("s_barrier")
    for j in range(1, 4): g(f"v_mov_b32 v{A4[0]+j}, 0")
    g(f"s_lshl_b32 s{sT[0]}, s{sUA}, 1\nv_add_u32 v{WAV}, s{sT[0]}, v{vCS}")
    g(f"ds_read_b32 v{A4[0]}, v{WAV} offset:768\ns_waitcnt lgkmcnt(0)")
    g(mfma32(A[0], A4[0], B4))
    g(f"s_lshl_b32 s{sT[0]}, s{sUA}, 5\ns_add_u32 s{sHb}, s{sHb}, s{sT[0]}")
    finish(A[0], vR, True, [(vL16, sHb, 0), (vL16, sHb, 1024)])
    g(f"{lj}:")
    g.stamp(6)
    AC = [48, 64, 80, 96]
    HF = 128
    WB = 24
    vWD, vTA0, vTA1, vFL, vXR, vOA = 2, 3, 4, 5, 192, 6
    sH, sWk, sWo, sRing = sT[4], sT[5], sT[6], sT[7]
    wdma_addr(g, vWD, vT0, 1024)
    tr_addr(g, vTA0, vT0, 3)
    g(f"""
    s_and_b32 s{sT[0]}, s{sW4}, 1
    s_lshl_b32 s{sRing}, s{sT[0]}, 16
    s_lshr_b32 s{sT[0]}, s{sW4}, 1
    s_lshl_b32 s{sT[0]}, s{sT[0]}, 14
    s_add_u32 s{sRing}, s{sRing}, s{sT[0]}
    v_add_u32 v{vTA0}, s{sRing}, v{vTA0}
    v_xor_b32 v{vTA1}, 64, v{vTA0}
    s_mul_i32 s{sH}, s{sRT3}, {2*144*1024}
    s_lshl_b32 s{sT[1]}, s{sCT}, 7
    s_mul_i32 s{sWk}, s{sW4}, {448*1024}
    s_add_u32 s{sWk}, s{sWk}, s{sT[1]}
    s_lshl_b32 s{sWo}, s{sW4}, 17
    s_add_u32 s{sWo}, s{sWo}, s{sT[1]}
    """)
    g(f"""
    v_and_b32 v{vFL}, 1, v0
    v_lshlrev_b32 v{vFL}, 12, v{vFL}
    v_lshrrev_b32 v{vT0}, 1, v0
    v_lshl_add_u32 v{vFL}, v{vT0}, 7, v{vFL}
    s_lshl_b32 s{sT[0]}, s{sRT3}, 13
    s_lshl_b32 s{sT[1]}, s{sW4}, 9
    s_add_u32 s{sT[0]}, s{sT[0]}, s{sT[1]}
    s_add_u32 s{sT[0]}, s{sT[0]}, {FL_OFF + FL_T}
    v_add_u32 v{vFL}, s{sT[0]}, v{vFL}
    """)
    g(f"""
    v_and_b32 v{vOA}, 31, v0
    v_lshlrev_b32 v{vOA}, 10, v{vOA}
    v_lshrrev_b32 v{vT0}, 5, v0
    v_lshl_add_u32 v{vOA}, v{vT0}, 5, v{vOA}
    s_lshl_b32 s{sT[0]}, s{sRT3}, 16
    s_and_b32 s{sT[1]}, s{sW4}, 1
    s_lshl_b32 s{sT[1]}, s{sT[1]}, 15
    s_add_u32 s{sT[0]}, s{sT[0]}, s{sT[1]}
    s_lshl_b32 s{sT[1]}, s{sCT}, 7
    s_add_u32 s{sT[0]}, s{sT[0]}, s{sT[1]}
    s_lshr_b32 s{sT[1]}, s{sW4}, 1
    s_lshl_b32 s{sT[1]}, s{sT[1]}, 6
    s_add_u32 s{sT[0]}, s{sT[0]}, s{sT[1]}
    v_add_u32 v{vOA}, s{sT[0]}, v{vOA}
    """)
    for a in AC:
        for j in range(16): g(f"v_mov_b32 v{a+j}, 0")
    g("s_waitcnt vmcnt(0)")
    g(f"s_add_u32 s{sT[14]}, s{sFQ}, {2*FL_T}")
    set_flag(g, sT[14], vT0, vZ)
    g(f"buffer_load_dwordx4 {vr(vXR,4)}, v{vOA}, {sr(SX)}, 0 offen\nbuffer_load_dwordx4 {vr(vXR+4,4)}, v{vOA}, {sr(SX)}, 0 offen offset:16")
    g.stamp(7)
    poll(g, vFL, vT0, "0xff", "ha")
    g.stamp(8)
    NS = 36
    def ks_of(n): return (KORDER[n], False) if n < 28 else (n - 28, True)
    def hload(n):
        k, isO = ks_of(n)
        out = []
        for rt in range(2):
            if not isO: out.append(f"s_mul_i32 s{sT[13]}, s{sW4}, {28*1024}"); imm = rt*144*1024 + k*1024
            else: out.append(f"s_lshl_b32 s{sT[13]}, s{sW4}, 13"); imm = rt*144*1024 + (112+k)*1024
            out.append(f"s_add_u32 s{sT[13]}, s{sT[13]}, s{sH}\ns_add_u32 s{sT[13]}, s{sT[13]}, {imm}")
            out.append(f"buffer_load_dwordx4 {vr(HF+8*(n%8)+4*rt,4)}, v{vL16}, {sr(SWS)}, s{sT[13]} offen sc1")
        return out
    def wload(n):
        k, isO = ks_of(n)
        for hh in range(2):
            dma(g, vWD, SWO if isO else SW2, sWo if isO else sWk, (16*k+8*hh)*1024, sRing, (n%8)*2048 + hh*1024)
    def wreads(n):
        out = []
        for u, va in enumerate((vTA0, vTA1)):
            for q in range(2):
                out.append(f"ds_read_b64_tr_b16 {vr(WB+8*(n&1)+4*u+2*q,2)}, v{va} offset:{(n%8)*2048+4*q*128}")
        return out
    vq = []
    for n in range(8):
        for x in hload(n): g(x)
        vq += [('h', n)] * 2
    for r in wreads(0): g(r)
    for n in range(NS):
        def wait_for(tags):
            idx = max((i for i, t in enumerate(vq) if t in tags), default=-1)
            if idx >= 0:
                g(f"s_waitcnt vmcnt({len(vq)-1-idx})")
        wait_for({('h', n), ('w', n+1)})
        if n + 1 < NS:
            for r in wreads(n+1): g(r)
            g("s_waitcnt lgkmcnt(4)")
        else:
            g("s_waitcnt lgkmcnt(0)")
        for u in range(2):
            for rt in range(2):
                g(mfma32(AC[2*u+rt], WB+8*(n&1)+4*u, HF+8*(n%8)+4*rt))
        m = n + 8
        if m < NS:
            wload(m); vq += [('w', m)] * 2
            if m == 16:
                g(f"v_add_u32 v{vFL}, {FL_T}, v{vFL}")
                poll(g, vFL, vT0, "0xff", "hb"); vq.clear()
                g.stamp(9)
            if m == 28:
                g(f"s_lshl_b32 s{sT[0]}, s{sW4}, 9\ns_add_u32 s{sT[0]}, s{sT[0]}, {FL_T}\nv_add_u32 v{vFL}, s{sT[0]}, v{vFL}")
                g.stamp(10)
                poll(g, vFL, vT0, "0xffff", "o"); vq.clear()
                g.stamp(11)
            for x in hload(m): g(x)
            vq += [('h', m)] * 2
    g.stamp(12)
    g(f"v_add_u32 v{vT0}, s{sRing}, v{vL16}\ns_nop 11")
    for qd in range(4):
        ls = g.lab("rw")
        g(f"s_cmp_eq_u32 s{sW4}, {qd}\ns_cbranch_scc1 {ls}")
        for j in range(4):
            g(f"ds_write_b128 v{vT0}, {vr(AC[qd]+4*j,4)} offset:{qd*4096+j*1024}")
        g(f"{ls}:")
    g("s_waitcnt lgkmcnt(0)\ns_barrier")
    OWN = 112
    for qd in range(4):
        ls = g.lab("mv")
        g(f"s_cmp_lg_u32 s{sW4}, {qd}\ns_cbranch_scc1 {ls}")
        for j in range(16): g(f"v_mov_b32 v{OWN+j}, v{AC[qd]+j}")
        g(f"{ls}:")
    g(f"s_lshl_b32 s{sT[0]}, s{sW4}, 12\nv_add_u32 v{vT0}, s{sT[0]}, v{vL16}\nv_add_u32 v{vT1}, {W1}, v{vT0}")
    g(f"v_add_u32 v{vT0}, s{sRing}, v{vL16}\nv_add_u32 v{vT0}, s{sT[0]}, v{vT0}")
    for i, xr in enumerate((65536, 16384, 65536 + 16384)):
        g(f"v_xor_b32 v{vT1}, {xr}, v{vT0}")
        for j in range(4):
            g(f"ds_read_b128 {vr(128+16*i+4*j,4)}, v{vT1} offset:{j*1024}")
    g("s_waitcnt lgkmcnt(0) vmcnt(0)")
    for j in range(16):
        g(f"v_add_f32 v{OWN+j}, v{OWN+j}, v{128+j}\nv_add_f32 v{144+j}, v{144+j}, v{160+j}")
    for j in range(8):
        g(f"v_lshlrev_b32 v{176+2*j}, 16, v{vXR+j}\nv_and_b32 v{177+2*j}, 0xffff0000, v{vXR+j}")
    for j in range(16):
        g(f"v_add_f32 v{OWN+j}, v{OWN+j}, v{144+j}")
    for j in range(16):
        g(f"v_add_f32 v{OWN+j}, v{OWN+j}, v{176+j}")
    for j in range(8): g(f"v_cvt_pk_bf16_f32 v{OWN+j}, v{OWN+2*j}, v{OWN+2*j+1}")
    g(f"buffer_store_dwordx4 {vr(OWN,4)}, v{vOA}, {sr(SOUT)}, 0 offen\nbuffer_store_dwordx4 {vr(OWN+4,4)}, v{vOA}, {sr(SOUT)}, 0 offen offset:16")
    g.stamp(13)
    g.dump_stamps(200)
    g("s_endpgm")

def build_H(g):
    vXe, vXo, vWq, vW1, vW2 = 2, 3, 4, 5, 6
    vXA = [7, 8]; vCA = 9; vCF0, vCF1 = 10, 11; vZ = 12; vT0, vT1 = 14, 15
    vSTw, vCSw = 16, 17
    ONE = 20
    XB = 24
    WBf = 40
    DS = [56, 60]; DQ = [64, 68]; DC = [72, 76]
    sXrow, sS0, sS1, sF2, sF3, sW2b, sL4, sL2 = sT[4], sT[5], sT[6], sT[7], sT[8], sT[9], sT[10], sT[11]
    sM1, sM2, sM3, sMV = 86, 88, 90, 92
    sM1, sM2, sM3, sMV = 10, 22, pQ, pW1
    g(f"v_and_b32 v{vXe}, 7, v0\nv_lshrrev_b32 v{vT0}, 4, v0\nv_xor_b32 v{vXe}, v{vXe}, v{vT0}\nv_lshlrev_b32 v{vXe}, 4, v{vXe}")
    g(f"v_lshrrev_b32 v{vT0}, 3, v0\nv_lshl_add_u32 v{vXe}, v{vT0}, 10, v{vXe}\nv_xor_b32 v{vXo}, 64, v{vXe}")
    wdma_addr(g, vWq, vT0, 3072)
    g(f"""
    s_lshl_b32 s{sXrow}, s{sRB}, 17
    s_lshl_b32 s{sT[0]}, s{sW4}, 15
    s_add_u32 s{sXrow}, s{sXrow}, s{sT[0]}
    s_mul_i32 s{sS1}, s{sW4}, {16*3072}
    s_lshl_b32 s{sT[0]}, s{sJJ}, 7
    s_add_u32 s{sS1}, s{sS1}, s{sT[0]}
    s_and_b32 s{sT[0]}, s{sC}, 1
    s_lshl_b32 s{sT[0]}, s{sT[0]}, 10
    s_add_u32 s{sS0}, s{sS1}, s{sT[0]}
    s_add_u32 s{sS1}, s{sS1}, 2048
    s_lshl_b32 s{sL4}, s{sW4}, 12
    s_lshl_b32 s{sL2}, s{sW4}, 11
    s_waitcnt lgkmcnt(0)
    """)
    if g.diag: g(f"s_mov_b32 s{sSTAMP}, s100")
    srd(g, SX, pX, 2048*1024); srd(g, SQ, pQ, 512*3072)
    def grpQ(c):
        slot = (c & 3) * 16384
        out = []
        for ii in range(4):
            out.append(lambda ii=ii: dma(g, vXo if ii & 1 else vXe, SX, sXrow, ii*8192 + c*128, sL4, W0 + slot + ii*1024))
        for sl, sb in enumerate((sS0, sS1)):
            for ii in range(2):
                out.append(lambda sl=sl, sb=sb, ii=ii: dma(g, vWq, SQ, sb, (64*c + 8*ii)*3072, sL2, W1 + slot + sl*8192 + ii*1024))
        return out
    def grpF(sb, e0, slot):
        out = []
        for e in (e0, e0 + 1):
            for ii in range(4):
                out.append(lambda e=e, ii=ii: dma(g, vW1, SW1, sb, (128*e + 8*ii)*3584, sL4, (W1 if e & 1 else W0) + slot*16384 + ii*1024))
        return out
    def grpW2(kq0):
        out = []
        for kq in (kq0, kq0 + 1):
            for ii in range(4):
                out.append(lambda kq=kq, ii=ii: dma(g, vW2, SW2, sW2b, (448*kq + 8*ii)*1024, sL4, RING[kq] + ii*1024))
        return out
    for c in range(4):
        for f in grpQ(c): f()
    srd(g, SW1, pW1, 512*3584); srd(g, SW2, pW2, 1792*1024); srd(g, SWS, pWS, WS_USED); srd(g, SDBG, pDBG, 256)
    g(f"v_mov_b32 v{vZ}, 0")
    wdma_addr(g, vW1, vT0, 3584); wdma_addr(g, vW2, vT0, 1024)
    fcols(g, sF2, sF3)
    g(f"""
    s_mul_i32 s{sT[0]}, s{sW4}, {32*3584}
    s_add_u32 s{sF2}, s{sF2}, s{sT[0]}
    s_add_u32 s{sF3}, s{sF3}, s{sT[0]}
    s_lshr_b32 s{sT[0]}, s{sW4}, 1
    s_lshl_b32 s{sT[0]}, s{sT[0]}, 16
    s_lshl_b32 s{sW2b}, s{sW4}, 15
    s_add_u32 s{sW2b}, s{sW2b}, s{sT[0]}
    s_lshl_b32 s{sT[0]}, s{sCT}, 7
    s_add_u32 s{sW2b}, s{sW2b}, s{sT[0]}
    """)
    g(f"""
    v_and_b32 v{vT0}, 15, v0
    s_lshl_b32 s{sT[0]}, s{sW4}, 5
    v_add_u32 v{vSTw}, s{sT[0]}, v{vT0}
    v_lshlrev_b32 v{vXA[0]}, 7, v{vSTw}
    v_lshlrev_b32 v{vSTw}, 3, v{vSTw}
    v_add_u32 v{vSTw}, {L_ST}, v{vSTw}
    v_lshrrev_b32 v{vT1}, 1, v{vT0}
    v_lshrrev_b32 v{vCA}, 4, v0
    v_xor_b32 v{vT1}, v{vT1}, v{vCA}
    v_lshl_add_u32 v{vXA[0]}, v{vT1}, 4, v{vXA[0]}
    v_xor_b32 v{vXA[1]}, 64, v{vXA[0]}
    """)
    g(f"""
    v_lshlrev_b32 v{vCA}, 10, v{vCA}
    v_bfe_u32 v{vT1}, v0, 2, 2
    v_lshl_add_u32 v{vCA}, v{vT1}, 7, v{vCA}
    v_bfe_u32 v{vT1}, v0, 3, 1
    v_lshl_add_u32 v{vCA}, v{vT1}, 6, v{vCA}
    v_and_b32 v{vT1}, 3, v0
    v_lshl_add_u32 v{vCA}, v{vT1}, 3, v{vCA}
    """)
    g(f"""
    s_lshr_b32 s{sT[0]}, s{sW4}, 1
    s_lshl_b32 s{sT[0]}, s{sT[0]}, 6
    v_xor_b32 v{vCF0}, s{sT[0]}, v{vCA}
    s_and_b32 s{sT[1]}, s{sW4}, 1
    s_lshl_b32 s{sT[1]}, s{sT[1]}, 5
    v_add_u32 v{vCF0}, s{sT[1]}, v{vCF0}
    v_add_u32 v{vCF1}, {W1}, v{vCF0}
    """)
    g(f"""
    s_and_b32 s{sT[1]}, s{sW4}, 1
    s_lshl_b32 s{sT[1]}, s{sT[1]}, 6
    v_xor_b32 v{vCA}, s{sT[1]}, v{vCA}
    s_lshr_b32 s{sT[0]}, s{sW4}, 1
    s_lshl_b32 s{sT[0]}, s{sT[0]}, 13
    s_add_u32 s{sT[0]}, s{sT[0]}, {W1}
    v_add_u32 v{vCA}, s{sT[0]}, v{vCA}
    v_lshlrev_b32 v{vCSw}, 2, v{vT0}
    v_add_u32 v{vCSw}, {L_CS}, v{vCSw}
    v_and_b32 v{vT1}, 3, v0
    v_cmp_eq_u32 s[{sM1}:{sM1+1}], 1, v{vT1}
    v_cmp_eq_u32 s[{sM2}:{sM2+1}], 2, v{vT1}
    v_cmp_eq_u32 s[{sM3}:{sM3+1}], 3, v{vT1}
    v_lshrrev_b32 v{vT1}, 2, v{vT0}
    v_lshrrev_b32 v{vT0}, 4, v0
    v_cmp_eq_u32 s[{sMV}:{sMV+1}], v{vT0}, v{vT1}
    """)
    for j in range(4): g(f"v_mov_b32 v{ONE+j}, 0x3f803f80")
    for a in DS + DQ + DC:
        for j in range(4): g(f"v_mov_b32 v{a+j}, 0")
    g("s_waitcnt vmcnt(24)\ns_barrier")
    g.stamp(1)
    def cs_write(d, off_code):
        g(f"v_cvt_pk_bf16_f32 v{vT0}, v{d}, v{d}\nv_and_b32 v{vT0}, 0xffff0000, v{vT0}\nv_sub_f32 v{vT1}, v{d}, v{vT0}\nv_cvt_pk_bf16_f32 v{vT0}, v{vT0}, v{vT1}")
        off_code()
    groups = {1: grpQ(4), 2: grpQ(5), 3: grpQ(6), 4: grpQ(7), 5: grpF(sF2, 0, 0), 6: grpF(sF2, 2, 1), 7: grpF(sF3, 0, 2)}
    for c in range(8):
        slot = (c & 3) * 16384
        for rt in range(2):
            for s2 in range(2):
                g(f"ds_read_b128 {vr(XB+8*rt+4*s2,4)}, v{vXA[s2]} offset:{slot+rt*2048}")
        for t in range(2):
            for s2 in range(2):
                for q in range(2):
                    g(f"ds_read_b64_tr_b16 {vr(WBf+8*t+4*s2+2*q,2)}, v{vCA} offset:{slot+t*32+(32*s2+4*q)*128}")
        dm = list(groups.get(c, []))
        mfs = []
        for s2 in range(2):
            for rt in range(2):
                mfs.append(mfma16(DS[rt], ONE, XB+8*rt+4*s2)); mfs.append(mfma16(DQ[rt], XB+8*rt+4*s2, XB+8*rt+4*s2))
        for s2 in range(2):
            for t in range(2):
                mfs.append(mfma16(DC[t], ONE, WBf+8*t+4*s2))
        late = (c == 7)
        if dm and not late: dm.pop(0)(); dm.pop(0)()
        g("s_waitcnt lgkmcnt(8)")
        for i, m in enumerate(mfs):
            if i == 8: g("s_waitcnt lgkmcnt(0)")
            g(m)
            if dm and not late and i % 2 == 1: dm.pop(0)()
        if c == 7:
            for rt in range(2):
                q = DQ[rt]; sm = DS[rt]
                g(f"v_cndmask_b32 v{q}, v{q}, v{q+1}, s[{sM1}:{sM1+1}]\nv_cndmask_b32 v{q}, v{q}, v{q+2}, s[{sM2}:{sM2+1}]\nv_cndmask_b32 v{q}, v{q}, v{q+3}, s[{sM3}:{sM3+1}]")
                g(f"v_mul_f32 v{sm}, 0x3b000000, v{sm}\nv_mul_f32 v{q}, 0x3b000000, v{q}\nv_fma_f32 v{q}, -v{sm}, v{sm}, v{q}\nv_max_f32 v{q}, 0, v{q}")
                g(f"v_cvt_pk_bf16_f32 v{sm+2}, -v{sm}, -v{sm}")
                g(f"v_cvt_pk_bf16_f32 v{q}, v{q}, v{q}\nv_and_b32 v{q}, 0xffff0000, v{q}\nv_add_f32 v{q}, 0x3727c5ac, v{q}")
                g(f"v_cvt_pk_bf16_f32 v{q}, v{q}, v{q}\nv_and_b32 v{q}, 0xffff0000, v{q}\nv_sqrt_f32 v{q}, v{q}")
                g(f"v_cvt_pk_bf16_f32 v{q}, v{q}, v{q}\nv_and_b32 v{q}, 0xffff0000, v{q}\nv_rcp_f32 v{sm+3}, v{q}")
                g(f"s_mov_b64 exec, s[{sMV}:{sMV+1}]\ns_nop 0\nds_write_b64 v{vSTw}, {vr(sm+2,2)} offset:{rt*128}\ns_mov_b64 exec, -1")
            g(f"s_lshl_b32 s{sT[0]}, s{sW4}, 7\nv_add_u32 v{XB}, s{sT[0]}, v{vCSw}")
            for t in range(2):
                cs_write(DC[t], lambda t=t: g(f"ds_write_b32 v{XB}, v{vT0} offset:{t*64}"))
            for j in range(4): g(f"v_mov_b32 v{DC[0]+j}, 0")
            g("s_waitcnt lgkmcnt(0)")
        while dm: dm.pop(0)()
        g("s_waitcnt vmcnt(16)\ns_barrier")
    g.stamp(2)
    def fblock(e, slot):
        va = vCF1 if e & 1 else vCF0
        for s2 in range(4):
            for q in range(2):
                g(f"ds_read_b64_tr_b16 {vr(WBf+4*s2+2*q,2)}, v{va} offset:{slot*16384+(32*s2+4*q)*128}")
    def fmf():
        g("s_waitcnt lgkmcnt(0)")
        for s2 in range(4): g(mfma16(DC[0], ONE, WBf+4*s2))
    def finterval(e0, slot, dm):
        for e in (e0, e0+1):
            fblock(e, slot)
            for _ in range(4):
                if dm: dm.pop(0)()
            fmf()
    g(f"s_lshl_b32 s{sT[0]}, s{sW4}, 6\nv_add_u32 v{XB}, s{sT[0]}, v{vCSw}")
    finterval(0, 0, grpF(sF3, 2, 3))
    g("s_waitcnt vmcnt(16)\ns_barrier")
    finterval(2, 1, grpW2(0))
    cs_write(DC[0], lambda: g(f"ds_write_b32 v{XB}, v{vT0} offset:512"))
    for j in range(4): g(f"v_mov_b32 v{DC[0]+j}, 0")
    g("s_waitcnt vmcnt(8) lgkmcnt(0)\ns_barrier")
    g.stamp(4)
    finterval(0, 2, grpW2(2))
    finterval(2, 3, [])
    cs_write(DC[0], lambda: g(f"ds_write_b32 v{XB}, v{vT0} offset:768"))
    get_nonce(g, vT0, vZ)
    g("s_waitcnt vmcnt(0) lgkmcnt(0)\ns_barrier")
    g.stamp(6)
    vL16, vFL, vKA, vVA, vInc, vQ, vM, vM2 = 2, 3, 4, 5, 6, 8, 16, 17
    vZ2 = 7
    g(f"v_mov_b32 v{vZ2}, 0")
    vQ = 24
    KF = 32
    BD, BO = 72, 88
    MK = 104
    NM = 112
    S = [128, 144]
    VF = [160, 168]
    O = 176
    vT0, vT1 = 18, 19
    sHead, sRT0, sSrc, sLd, sNV, sO, sFO = sT[4], sT[5], sT[6], sT[7], sT[8], sT[9], sT[10]
    sEX = 10
    g(f"""
    v_lshlrev_b32 v{vL16}, 4, v0
    s_and_b32 s{sT[0]}, s{sW4}, 1
    s_lshl_b32 s{sHead}, s{sC}, 1
    s_add_u32 s{sHead}, s{sHead}, s{sT[0]}
    s_lshr_b32 s{sT[1]}, s{sW4}, 1
    s_lshl_b32 s{sRT0}, s{sRB}, 2
    s_lshl_b32 s{sT[2]}, s{sT[1]}, 1
    s_add_u32 s{sRT0}, s{sRT0}, s{sT[2]}
    s_lshl_b32 s{sSrc}, s{sT[1]}, 21
    s_add_u32 s{sSrc}, s{sSrc}, {KF_OFF - 8192}
    s_lshl_b32 s{sT[2]}, s{sHead}, 16
    s_add_u32 s{sSrc}, s{sSrc}, s{sT[2]}
    s_lshl_b32 s{sT[3]}, s{sRB}, 12
    s_add_u32 s{sSrc}, s{sSrc}, s{sT[3]}
    s_lshl_b32 s{sLd}, s{sT[1]}, 16
    s_mul_i32 s{sT[3]}, s{sT[0]}, 12288
    s_add_u32 s{sLd}, s{sLd}, s{sT[3]}
    s_add_u32 s{sLd}, s{sLd}, {L_K}
    s_lshl_b32 s{sT[3]}, s{sJJ}, 1
    s_add_u32 s{sT[12]}, s{sT[3]}, 1
    s_cmp_eq_u32 s{sT[1]}, 0
    s_cselect_b32 s{sT[12]}, s{sT[12]}, s{sC}
    s_lshl_b32 s{sT[13]}, s{sRB}, 2
    s_sub_u32 s{sT[13]}, s{sT[13]}, 8
    v_add_u32 v{vFL}, s{sT[13]}, v0
    v_lshlrev_b32 v{vFL}, 5, v{vFL}
    v_add_u32 v{vFL}, s{sT[12]}, v{vFL}
    s_sub_u32 s{sT[13]}, s{sRT0}, 12
    v_add_u32 v{vT0}, s{sT[13]}, v0
    v_lshlrev_b32 v{vT0}, 5, v{vT0}
    v_add_u32 v{vT0}, s{sT[3]}, v{vT0}
    v_cmp_gt_u32 vcc, 12, v0
    v_cndmask_b32 v{vFL}, v{vT0}, v{vFL}, vcc
    v_lshlrev_b32 v{vFL}, 7, v{vFL}
    v_add_u32 v{vFL}, {FL_OFF}, v{vFL}
    s_lshl_b32 s{sT[13]}, s{sRB}, 2
    s_sub_i32 s{sT[13]}, 8, s{sT[13]}
    s_max_i32 s{sT[13]}, s{sT[13]}, 0
    s_lshl_b32 s{sEX}, 0x3fff, s{sT[13]}
    s_and_b32 s{sEX}, s{sEX}, 0x3fff
    s_mov_b32 s{sEX+1}, 0
    """)
    g(f"v_and_b32 v{vT0}, 31, v0\nv_lshrrev_b32 v{vT1}, 5, v0\nv_lshlrev_b32 v{vT1}, 2, v{vT1}\nv_sub_u32 v{vT0}, v{vT0}, v{vT1}\nv_mov_b32 v{vT1}, 0xff800000")
    for r in range(16):
        k0 = (r & 3) + 8 * (r >> 2)
        g(f"v_cmp_gt_i32 vcc, {k0}, v{vT0}\nv_cndmask_b32 v{BD+r}, 0, v{vT1}, vcc\nv_cndmask_b32 v{BO+r}, v{vT1}, 0, vcc")
    for d in range(8):
        g(f"v_ashrrev_i32 v{vM}, 31, v{BO+2*d}\nv_ashrrev_i32 v{vM2}, 31, v{BO+2*d+1}\nv_and_b32 v{vM}, 0xffff, v{vM}\nv_and_b32 v{vM2}, 0xffff0000, v{vM2}\nv_or_b32 v{MK+d}, v{vM}, v{vM2}")
    g(f"""
    s_and_b32 s{sT[0]}, s{sW4}, 1
    s_mul_i32 s{sT[0]}, s{sT[0]}, 12288
    s_lshr_b32 s{sT[1]}, s{sW4}, 1
    s_lshl_b32 s{sT[1]}, s{sT[1]}, 11
    s_add_u32 s{sT[0]}, s{sT[0]}, s{sT[1]}
    s_add_u32 s{sT[1]}, s{sT[0]}, {L_K}
    v_add_u32 v{vKA}, s{sT[1]}, v{vL16}
    s_add_u32 s{sT[11]}, s{sT[0]}, {L_V}
    """)
    g.stamp(7)
    poll(g, vFL, vT0, f"s[{sEX}:{sEX+1}]", "qkv")
    g.stamp(8)
    for t in range(12):
        dma(g, vL16, SWS, sSrc, t*1024, sLd, t*1024, "sc1")
    g(f"""
    s_lshl_b32 s{sT[0]}, s{sHead}, 6
    s_add_u32 s{sT[0]}, s{sT[0]}, s{sRT0}
    s_lshl_b32 s{sT[0]}, s{sT[0]}, 10
    s_add_u32 s{sT[0]}, s{sT[0]}, {QF_OFF}
    buffer_load_dwordx4 {vr(vQ,4)}, v{vL16}, {sr(SWS)}, s{sT[0]} offen sc1
    buffer_load_dwordx4 {vr(vQ+4,4)}, v{vL16}, {sr(SWS)}, s{sT[0]} offen offset:1024 sc1
    s_mul_i32 s{sO}, s{sRT0}, {144*1024}
    s_lshl_b32 s{sT[0]}, s{sHead}, 10
    s_add_u32 s{sO}, s{sO}, s{sT[0]}
    s_add_u32 s{sO}, s{sO}, {HO_OFF + 112*1024}
    s_lshl_b32 s{sFO}, s{sRT0}, 5
    s_add_u32 s{sFO}, s{sFO}, s{sHead}
    s_lshl_b32 s{sFO}, s{sFO}, 7
    s_add_u32 s{sFO}, s{sFO}, {FL_OFF + 3*FL_T}
    """)
    vVB = 20
    g(f"""
    v_lshrrev_b32 v{vT0}, 5, v0
    v_lshlrev_b32 v{vVB}, 7, v{vT0}
    v_bfe_u32 v{vT1}, v0, 2, 2
    v_lshl_add_u32 v{vVB}, v{vT1}, 5, v{vVB}
    v_bfe_u32 v{vT1}, v0, 0, 1
    v_lshl_add_u32 v{vVB}, v{vT1}, 4, v{vVB}
    v_bfe_u32 v{vT1}, v0, 1, 1
    v_lshl_add_u32 v{vVB}, v{vT1}, 3, v{vVB}
    v_add_u32 v{vVB}, s{sT[11]}, v{vVB}
    v_xor_b32 v{vT0}, 1, v{vT0}
    v_lshlrev_b32 v{vT0}, 7, v{vT0}
    v_and_b32 v{vT1}, 15, v0
    v_lshl_add_u32 v{vT0}, v{vT1}, 3, v{vT0}
    v_add_u32 v{vT0}, {L_ONES}, v{vT0}
    v_bfe_u32 v{vT1}, v0, 4, 1
    v_cmp_eq_u32 vcc, 0, v{vT1}
    v_cndmask_b32 v{vVB}, v{vT0}, v{vVB}, vcc
    v_mov_b32 v{vT0}, 1024
    v_cndmask_b32 v{vInc}, 0, v{vT0}, vcc
    v_mov_b32 v{vT0}, {L_CNT}
    v_mov_b32 v{vT1}, 1
    s_waitcnt vmcnt(0)
    s_mov_b64 exec, 1
    ds_add_u32 v{vT0}, v{vT1}
    s_mov_b64 exec, -1
    s_mov_b32 s{sSPIN}, 0
    """)
    lp, ld = g.lab("cnt"), g.lab("cntd")
    g(f"{lp}:\nds_read_b32 v{vT1}, v{vT0}\ns_add_u32 s{sSPIN}, s{sSPIN}, 1\ns_waitcnt lgkmcnt(0)\nv_readfirstlane_b32 s{sT[0]}, v{vT1}")
    g(f"s_cmp_gt_u32 s{sSPIN}, {SPIN_MAX*20}\ns_cbranch_scc1 {ld}\ns_cmp_lt_u32 s{sT[0]}, 4\ns_cbranch_scc1 {lp}\n{ld}:")
    g.stamp(9)
    for n in range(10):
        g(f"ds_read_b128 {vr(KF+4*n,4)}, v{vKA} offset:{(9-n)*1024}")
    g("s_waitcnt lgkmcnt(0)")
    for un in range(2):
        k0 = 1 - un
        Q = vQ + 4*un
        g(f"s_add_u32 s{sNV}, s{sRT0}, {un+1}\ns_min_u32 s{sNV}, s{sNV}, 9")
        g(f"v_mul_u32_u24 v{vVA}, {9-k0}, v{vInc}\nv_add_u32 v{vVA}, v{vVA}, v{vVB}")
        def vreads(n):
            for s in range(2):
                for q in range(2):
                    g(f"ds_read_b64_tr_b16 {vr(VF[n&1]+4*s+2*q,2)}, v{vVA} offset:{(16*s+8*q)*32}")
            g(f"v_sub_u32 v{vVA}, v{vVA}, v{vInc}")
        vreads(0)
        p1 = g.lab("p1")
        def cb(n): return BD if n == 0 else (BO if n == 8 else "0")
        g(mfma32(S[0], KF+4*k0, Q, cb(0)))
        for n in range(9):
            if n + 1 < 9: g(mfma32(S[(n+1)&1], KF+4*(k0+n+1), Q, cb(n+1)))
            if n > 0: g(f"s_cmp_le_u32 s{sNV}, {n}\ns_cbranch_scc1 {p1}")
            s = S[n&1]
            if n == 0:
                g(f"v_max_f32 v{vM}, v{s}, v{s+1}")
                for j in range(1, 8): g(f"v_max3_f32 v{vM}, v{s+2*j}, v{s+2*j+1}, v{vM}")
            else:
                for j in range(8): g(f"v_max3_f32 v{vM}, v{s+2*j}, v{s+2*j+1}, v{vM}")
        g(f"{p1}:")
        g(f"v_mov_b32 v{vM2}, v{vM}\ns_nop 1\nv_permlane32_swap_b32 v{vM}, v{vM2}\nv_max_f32 v{vM}, v{vM}, v{vM2}")
        for j in range(16): g(f"v_sub_f32 v{NM+j}, 0, v{vM}")
        g("s_nop 7")
        p2 = g.lab("p2")
        g(mfma32(S[0], KF+4*k0, Q, NM))
        for n in range(9):
            if n > 0: g(f"s_cmp_le_u32 s{sNV}, {n}\ns_cbranch_scc1 {p2}")
            if n + 1 < 9:
                g(mfma32(S[(n+1)&1], KF+4*(k0+n+1), Q, NM))
                vreads(n+1)
            s = S[n&1]
            for j in range(16): g(f"v_exp_f32 v{s+j}, v{s+j}")
            for j in range(8): g(f"v_cvt_pk_bf16_f32 v{s+j}, v{s+2*j}, v{s+2*j+1}")
            if n == 0:
                for j in range(8): g(f"v_and_b32 v{s+j}, v{s+j}, v{MK+j}")
            if n == 8:
                for j in range(8): g(f"v_bfi_b32 v{s+j}, v{MK+j}, 0, v{s+j}")
            g(f"s_waitcnt lgkmcnt({4 if n + 1 < 9 else 0})")
            g(mfma32(O, VF[n&1], s, "0" if n == 0 else None))
            g(mfma32(O, VF[n&1]+4, s+4))
        g(f"{p2}:")
        g("s_nop 11\ns_waitcnt lgkmcnt(0)")
        g(f"v_rcp_f32 v{vM}, v{O+8}")
        for j in range(8): g(f"v_mul_f32 v{O+j}, v{O+j}, v{vM}")
        for j in range(4): g(f"v_cvt_pk_bf16_f32 v{O+j}, v{O+2*j}, v{O+2*j+1}")
        g(f"s_add_u32 s{sT[0]}, s{sO}, {un*144*1024}")
        g(f"buffer_store_dwordx4 {vr(O,4)}, v{vL16}, {sr(SWS)}, s{sT[0]} offen sc1")
        if un == 1:
            g("s_waitcnt vmcnt(0)")
            set_flag(g, sFO, vT0, vZ2)
            g(f"s_add_u32 s{sFO}, s{sFO}, 4096")
            set_flag(g, sFO, vT0, vZ2)
        g.stamp(10 + un)
    g("s_barrier")
    g.dump_stamps(200)
    g("s_endpgm")

HEADER = open("parallel_sum__sliding_block__dense_activation_relu__prompt.s.ref").read().split("; Override")[0]
def emit(path, **kw):
    g = build(**kw)
    lines, added = hz.fix(g.L)
    txt = HEADER + f"; @launch grid=(256,1,1) block=(512,1,1) lds={LDS_TOTAL}\n" + f""".amdgcn_target "amdgcn-amd-amdhsa--gfx950"
.text
.globl {KNAME}
.p2align 8
.type {KNAME},@function
{KNAME}:
""" + "\n".join(lines) + f"""
    s_endpgm
.section .rodata,"a"
.p2align 6
.amdhsa_kernel {KNAME}
  .amdhsa_next_free_vgpr 256
  .amdhsa_next_free_sgpr 102
  .amdhsa_accum_offset 256
  .amdhsa_group_segment_fixed_size 0
  .amdhsa_kernarg_size 72
  .amdhsa_user_sgpr_count 2
  .amdhsa_user_sgpr_kernarg_segment_ptr 1
  .amdhsa_system_sgpr_workgroup_id_x 1
.end_amdhsa_kernel
"""
    open(path, "w").write(txt)
    print(f"wrote {path}: {len(lines)} lines, {added} nops added")
if __name__ == "__main__":
    ap = argparse.ArgumentParser()
    ap.add_argument("-o", default="parallel_sum__sliding_block__dense_activation_relu__prompt.s")
    ap.add_argument("--diag", action="store_true")
    a = ap.parse_args()
    emit(a.o, diag=a.diag)
```

```python
import sys, argparse
import hz
KNAME = "parallel_sum__sliding_block__dense_activation_relu__prompt_kernel"

HO_OFF = 0x000000
QF_OFF = 0x900000
KF_OFF = 0xB00000
VF_OFF = 0xD00000
FL_OFF = 0xF00000
FL_T = 64 * 32 * 128
ST_OFF = 0x1000000
WS_USED = 0x1040000
W0, W1 = 0, 65536
MISC = 155648
L_ST, L_CS, L_ONES, L_CNT = MISC, MISC + 1024, MISC + 2048, MISC + 3072
LDS_TOTAL = 163840
RING = [W0, W1, W0 + 16384, W1 + 16384]
L_K, L_V = W0 + 32768, W1 + 32768
pX, pQ, pWO, pW1, pW2, pOUT, pDBG, pWS = 4, 6, 8, 12, 14, 16, 18, 20
SX, SQ, SW1, SW2, SWO, SOUT, SWS, SDBG = 24, 28, 32, 36, 40, 44, 48, 52
sWAVE, sRB, sC, sJJ, sRT3, sCT, sW4 = 56, 57, 58, 59, 60, 61, 62
sT = list(range(64, 80))
sN0, sN1 = 80, 81
sSPIN = 82
sSTAMP = 84
SPIN_MAX = 60000

class G:
    def __init__(self, diag=False, stop=None):
        self.L = []; self.diag = diag; self.stop = stop; self.nlab = 0; self.nst = 0
    def __call__(self, s):
        for ln in s.strip('\n').split('\n'):
            ln = ln.strip()
            if ln: self.L.append(ln if ln.endswith(':') else "    " + ln)
    def lab(self, base):
        self.nlab += 1; return f"L_{base}_{self.nlab}"
    def stamp(self, i):
        if self.diag:
            self(f"s_memrealtime s[{100}:{101}]\ns_waitcnt lgkmcnt(0)\ns_mov_b32 s{sSTAMP+i}, s100")
    def dump_stamps(self, vt, role='M'):
        if self.diag == 2:
            sel = [(0, 2, True)] + ([(1,3,0),(2,4,0),(3,5,0),(4,6,0),(6,7,0),(8,8,0),(11,9,0),(12,10,0),(13,11,0)] if role == 'M' else [(8,12,0),(9,13,0),(11,14,0)])
            self("s_mov_b64 exec, 1")
            for (i, w, inv) in sel:
                if inv: self(f"s_not_b32 s{sT[0]}, s{sSTAMP+i}\nv_mov_b32 v{vt}, s{sT[0]}")
                else: self(f"v_mov_b32 v{vt}, s{sSTAMP+i}")
                self(f"v_mov_b32 v{vt+1}, {4*w}\nbuffer_atomic_umax v{vt}, v{vt+1}, s[{SDBG}:{SDBG+3}], 0 offen sc1\ns_waitcnt vmcnt(0)")
            self("s_mov_b64 exec, -1")
        elif self.diag:
            self(f"s_lshl_b32 s{sT[0]}, s2, 3\ns_add_u32 s{sT[0]}, s{sT[0]}, s{sWAVE}\ns_lshl_b32 s{sT[0]}, s{sT[0]}, 6\ns_add_u32 s{sT[0]}, s{sT[0]}, {ST_OFF}")
            self("s_mov_b64 exec, 1")
            self(f"v_mov_b32 v{vt+4}, 0")
            for q in range(4):
                for j in range(4): self(f"v_mov_b32 v{vt+j}, s{sSTAMP+4*q+j}")
                self(f"buffer_store_dwordx4 v[{vt}:{vt+3}], v{vt+4}, s[{SWS}:{SWS+3}], s{sT[0]} offen offset:{16*q}")
                self("s_waitcnt vmcnt(0)")
            self("s_mov_b64 exec, -1")

def vr(a, n): return f"v[{a}:{a+n-1}]" if n > 1 else f"v{a}"
def sr(a, n=4): return f"s[{a}:{a+n-1}]"
def mfma32(d, a, b, c=None):
    cs = vr(d, 16) if c is None else (c if isinstance(c, str) else vr(c, 16))
    return f"v_mfma_f32_32x32x16_bf16 {vr(d,16)}, {vr(a,4)}, {vr(b,4)}, {cs}"
def mfma16(d, a, b, c=None):
    cs = vr(d, 4) if c is None else (c if isinstance(c, str) else vr(c, 4))
    return f"v_mfma_f32_16x16x32_bf16 {vr(d,4)}, {vr(a,4)}, {vr(b,4)}, {cs}"
def srd(g, s, p, nbytes):
    g(f"s_mov_b32 s{s}, s{p}\ns_and_b32 s{s+1}, s{p+1}, 0xffff\ns_mov_b32 s{s+2}, {nbytes}\ns_mov_b32 s{s+3}, 0x20000")

def dma(g, vaddr, S, sbase, soff_imm, slds, lds_imm, flags=""):
    g(f"s_add_u32 m0, s{slds}, {lds_imm}")
    g(f"s_add_u32 s{sT[15]}, s{sbase}, {soff_imm}")
    g(f"buffer_load_dwordx4 v{vaddr}, {sr(S)}, s{sT[15]} offen {flags} lds")

def poll(g, vaddr, vd, execmask_s, name):
    lp, done = g.lab(name + "_p"), g.lab(name + "_d")
    g(f"s_mov_b64 exec, {execmask_s}")
    g(f"s_mov_b32 s{sSPIN}, 0")
    g(f"{lp}:")
    g(f"buffer_load_dwordx2 {vr(vd,2)}, v{vaddr}, {sr(SWS)}, 0 offen sc1")
    g(f"s_add_u32 s{sSPIN}, s{sSPIN}, 1")
    g("s_waitcnt vmcnt(0)")
    g(f"v_cmp_ne_u64 vcc, s[{sN0}:{sN1}], {vr(vd,2)}")
    g(f"s_cmp_gt_u32 s{sSPIN}, {SPIN_MAX}")
    g(f"s_cbranch_scc1 {done}")
    g(f"s_cbranch_vccnz {lp}")
    g(f"{done}:")
    g("s_mov_b64 exec, -1")

def get_nonce(g, vd, vz):
    lp, done = g.lab("non_p"), g.lab("non_d")
    g(f"s_mov_b32 s{sSPIN}, 0")
    g(f"{lp}:")
    g(f"buffer_load_dwordx2 {vr(vd,2)}, v{vz}, {sr(SDBG)}, 0 offen sc1")
    g(f"s_add_u32 s{sSPIN}, s{sSPIN}, 1")
    g("s_waitcnt vmcnt(0)")
    g(f"v_readfirstlane_b32 s{sN0}, v{vd}\nv_readfirstlane_b32 s{sN1}, v{vd+1}")
    g(f"s_cmp_gt_u32 s{sSPIN}, {SPIN_MAX}")
    g(f"s_cbranch_scc1 {done}")
    g(f"s_cmp_eq_u32 s{sN0}, 0\ns_cbranch_scc1 {lp}")
    g(f"{done}:")

def set_flag(g, sflag, vd, vz):
    g(f"v_mov_b32 v{vd}, s{sN0}\nv_mov_b32 v{vd+1}, s{sN1}")
    g("s_mov_b64 exec, 1")
    g(f"buffer_store_dwordx2 {vr(vd,2)}, v{vz}, {sr(SWS)}, s{sflag} offen sc1")
    g("s_mov_b64 exec, -1")

def pipeline(g, steps, D, first_barrier_done=True):
    n = len(steps)
    issued = []
    def emit_reads_list(k):
        return list(steps[k]['reads'])
    for k in range(min(D, n)):
        if steps[k].get('newblock') and k > 0:
            g("s_waitcnt lgkmcnt(0)\ns_barrier")
        for r in steps[k]['reads']: g(r)
    for i in range(n):
        nxt = i + D
        rd = emit_reads_list(nxt) if nxt < n else []
        for p in steps[i].get('pre', []): g(p)
        if nxt < n and steps[nxt].get('newblock'):
            g("s_waitcnt lgkmcnt(0)")
            for p in steps[nxt].get('prebar', []): g(p)
            g("s_barrier")
        else:
            later = sum(len(steps[k]['reads']) for k in range(i + 1, min(nxt, n)))
            g(f"s_waitcnt lgkmcnt({min(later,15)})")
        mf = steps[i]['mf']
        per = -(-len(rd) // len(mf)) if mf else 0
        for j, m in enumerate(mf):
            g(m)
            for r in rd[j*per:(j+1)*per]: g(r)
        if not mf:
            for r in rd: g(r)

def build(diag=False, stop=None):
    g = G(diag, stop)
    g(f"""
    s_cmp_ge_u32 s2, 256
    s_cbranch_scc1 L_END
    s_load_dwordx16 s[4:19], s[0:1], 0
    s_load_dwordx2 s[20:21], s[0:1], 64
    v_lshrrev_b32 v1, 6, v0
    v_and_b32 v0, 63, v0
    v_readfirstlane_b32 s{sWAVE}, v1
    s_and_b32 s{sT[0]}, s2, 7
    s_lshr_b32 s{sT[1]}, s2, 3
    s_and_b32 s{sRB}, s{sT[0]}, 1
    s_lshl_b32 s{sRB}, s{sRB}, 3
    s_and_b32 s{sT[2]}, s{sT[1]}, 7
    s_add_u32 s{sRB}, s{sRB}, s{sT[2]}
    s_lshr_b32 s{sC}, s{sT[0]}, 1
    s_lshl_b32 s{sC}, s{sC}, 2
    s_lshr_b32 s{sT[2]}, s{sT[1]}, 3
    s_add_u32 s{sC}, s{sC}, s{sT[2]}
    s_lshr_b32 s{sJJ}, s{sC}, 1
    s_lshl_b32 s{sRT3}, s{sT[0]}, 2
    s_and_b32 s{sT[2]}, s{sT[1]}, 3
    s_add_u32 s{sRT3}, s{sRT3}, s{sT[2]}
    s_lshr_b32 s{sCT}, s{sT[1]}, 2
    s_and_b32 s{sW4}, s{sWAVE}, 3
    """)
    if diag:
        for i in range(16): g(f"s_mov_b32 s{sSTAMP+i}, 0")
        g(f"s_memrealtime s[100:101]")
    g(f"s_cmp_ge_u32 s{sWAVE}, 4\ns_cbranch_scc1 L_H")
    build_M(g)
    g("L_H:")
    build_H(g)
    g("L_END:")
    return g

def tr_addr(g, vd, vt, kind):
    g(f"v_lshrrev_b32 v{vd}, 5, v0\nv_lshlrev_b32 v{vd}, 10, v{vd}")
    g(f"v_bfe_u32 v{vt}, v0, 2, 2\nv_lshl_add_u32 v{vd}, v{vt}, 7, v{vd}")
    g(f"v_bfe_u32 v{vt}, v0, 3, 1\nv_lshl_add_u32 v{vd}, v{vt}, 6, v{vd}")
    if kind == 1:
        sh = (5, 4, 3)
    else:
        sh = (4, 5, 3)
    g(f"v_bfe_u32 v{vt}, v0, 4, 1\nv_lshl_add_u32 v{vd}, v{vt}, {sh[0]}, v{vd}")
    g(f"v_bfe_u32 v{vt}, v0, 0, 1\nv_lshl_add_u32 v{vd}, v{vt}, {sh[1]}, v{vd}")
    g(f"v_bfe_u32 v{vt}, v0, 1, 1\nv_lshl_add_u32 v{vd}, v{vt}, {sh[2]}, v{vd}")

def wdma_addr(g, vd, vt, ld):
    g(f"v_bfe_u32 v{vt}, v0, 4, 1\nv_lshlrev_b32 v{vt}, 2, v{vt}\nv_and_b32 v{vd}, 7, v0\nv_xor_b32 v{vd}, v{vd}, v{vt}\nv_lshlrev_b32 v{vd}, 4, v{vd}")
    g(f"v_lshrrev_b32 v{vt}, 3, v0\nv_mul_u32_u24 v{vt}, {ld}, v{vt}\nv_add_u32 v{vd}, v{vd}, v{vt}")

def fcols(g, sA, sB):
    g(f"""
    s_and_b32 s{sT[0]}, s{sC}, 3
    s_lshl_b32 s{sT[0]}, s{sT[0]}, 2
    s_mul_i32 s{sT[1]}, s{sJJ}, 448
    s_lshr_b32 s{sA}, 0x3140, s{sT[0]}
    s_and_b32 s{sA}, s{sA}, 15
    s_lshl_b32 s{sA}, s{sA}, 6
    s_add_u32 s{sA}, s{sA}, s{sT[1]}
    s_lshr_b32 s{sB}, 0x6073, s{sT[0]}
    s_and_b32 s{sB}, s{sB}, 15
    s_lshl_b32 s{sB}, s{sB}, 6
    s_add_u32 s{sB}, s{sB}, s{sT[1]}
    s_sub_u32 s{sB}, s{sB}, 64
    """)

KORDER = [0,1,2,3,8,9,10,11,16,17,18,19,20,21,22,23] + [4,5,6,7,12,13,14,15,24,25,26,27]

def build_M(g):
    XF = 128
    A = [48, 64, 80, 96, 112]
    WF = 24
    XA = [2, 3, 4, 5]
    WA0 = [6, 7]; WA1 = [8, 9]; WAV = 10
    vCS, vST, vL16, vLV, vZ, vR, vRQ = 11, 12, 13, 14, 15, 16, 17
    vT0, vT1 = 18, 19
    B4 = 20
    sQK, sV, sHa, sHb, sFQ, sQS, sFA, sFB, sUA = sT[4], sT[5], sT[6], sT[7], sT[8], sT[9], sT[10], sT[11], sT[12]
    g(f"v_and_b32 v{vT0}, 31, v0\ns_lshl_b32 s{sT[0]}, s{sW4}, 5\nv_add_u32 v{vT0}, s{sT[0]}, v{vT0}")
    g(f"v_lshlrev_b32 v{vST}, 3, v{vT0}\nv_add_u32 v{vST}, {L_ST}, v{vST}")
    g(f"v_lshlrev_b32 v{vT0}, 7, v{vT0}")
    g(f"v_lshrrev_b32 v{vT1}, 5, v0\nv_bfe_u32 v{XA[0]}, v0, 1, 3\nv_xor_b32 v{vT1}, v{vT1}, v{XA[0]}")
    g(f"v_lshl_add_u32 v{XA[0]}, v{vT1}, 4, v{vT0}")
    for s in range(1, 4): g(f"v_xor_b32 v{XA[s]}, {32*s}, v{XA[0]}")
    tr_addr(g, WA0[0], vT0, 1)
    g(f"v_xor_b32 v{WA0[1]}, 64, v{WA0[0]}\nv_add_u32 v{WA1[0]}, {W1}, v{WA0[0]}\nv_add_u32 v{WA1[1]}, {W1}, v{WA0[1]}")
    g(f"s_and_b32 s{sT[0]}, s{sC}, 1\ns_lshl_b32 s{sT[0]}, s{sT[0]}, 6\nv_xor_b32 v{WAV}, s{sT[0]}, v{WA1[0]}")
    g(f"v_and_b32 v{vCS}, 0x13, v0\nv_bfe_u32 v{vT0}, v0, 2, 1\nv_lshl_add_u32 v{vCS}, v{vT0}, 3, v{vCS}\nv_bfe_u32 v{vT0}, v0, 3, 1\nv_lshl_add_u32 v{vCS}, v{vT0}, 2, v{vCS}")
    g(f"v_lshlrev_b32 v{vCS}, 2, v{vCS}\nv_add_u32 v{vCS}, {L_CS}, v{vCS}")
    g(f"v_lshlrev_b32 v{vL16}, 4, v0")
    g(f"v_and_b32 v{vLV}, 31, v0\nv_lshlrev_b32 v{vLV}, 5, v{vLV}\nv_lshrrev_b32 v{vT0}, 5, v0\nv_lshl_add_u32 v{vLV}, v{vT0}, 4, v{vLV}")
    g(f"v_mov_b32 v{vZ}, 0")
    for j in range(4): g(f"v_mov_b32 v{B4+j}, 0")
    for a in A[:3]:
        for j in range(16): g(f"v_mov_b32 v{a+j}, 0")
    lskip = g.lab("init")
    g(f"s_cmp_lg_u32 s{sWAVE}, 0\ns_cbranch_scc1 {lskip}")
    for j in range(4): g(f"v_mov_b32 v{WF+j}, 0x3f803f80")
    g(f"v_add_u32 v{vT0}, {L_ONES}, v{vL16}\nds_write_b128 v{vT0}, {vr(WF,4)}\nv_mov_b32 v{vT0}, {L_CNT}\nds_write_b32 v{vT0}, v{vZ}")
    g(f"{lskip}:")
    g("s_waitcnt lgkmcnt(0)")
    if g.diag: g(f"s_mov_b32 s{sSTAMP}, s100")
    srd(g, SWS, pWS, WS_USED); srd(g, SDBG, pDBG, 256); srd(g, SW2, pW2, 1792*1024); srd(g, SWO, pWO, 512*1024)
    ln = g.lab("non")
    g(f"s_or_b32 s{sT[0]}, s2, s{sWAVE}\ns_cmp_lg_u32 s{sT[0]}, 0\ns_cbranch_scc1 {ln}")
    g(f"s_memrealtime s[{sN0}:{sN1}]\ns_waitcnt lgkmcnt(0)\ns_or_b32 s{sN0}, s{sN0}, 1\ns_xor_b32 s{sN1}, s{sN1}, 0x5a3c96e1")
    g(f"v_mov_b32 v{vT0}, s{sN0}\nv_mov_b32 v{vT1}, s{sN1}\ns_mov_b64 exec, 1")
    g(f"buffer_store_dwordx2 {vr(vT0,2)}, v{vZ}, {sr(SDBG)}, 0 offen sc1\ns_mov_b64 exec, -1")
    g(f"{ln}:")
    srd(g, SX, pX, 2048*1024); srd(g, SOUT, pOUT, 2048*1024)
    g(f"""
    s_lshl_b32 s{sT[0]}, s{sRB}, 2
    s_add_u32 s{sT[0]}, s{sT[0]}, s{sW4}          ; RT
    s_and_b32 s{sT[1]}, s{sC}, 1
    s_lshl_b32 s{sQK}, s{sT[1]}, 21
    s_add_u32 s{sQK}, s{sQK}, {QF_OFF}
    s_lshl_b32 s{sT[2]}, s{sJJ}, 18
    s_add_u32 s{sQK}, s{sQK}, s{sT[2]}
    s_lshl_b32 s{sT[2]}, s{sT[0]}, 10
    s_add_u32 s{sQK}, s{sQK}, s{sT[2]}
    s_lshl_b32 s{sV}, s{sC}, 17
    s_add_u32 s{sV}, s{sV}, {VF_OFF}
    s_add_u32 s{sV}, s{sV}, s{sT[2]}
    s_cmp_eq_u32 s{sT[1]}, 0
    s_cselect_b32 s{sQS}, 0x3eb8aa3b, 1.0
    s_lshl_b32 s{sFQ}, s{sT[0]}, 5
    s_add_u32 s{sFQ}, s{sFQ}, s{sC}
    s_lshl_b32 s{sFQ}, s{sFQ}, 7
    s_add_u32 s{sFQ}, s{sFQ}, {FL_OFF}
    s_mul_i32 s{sT[3]}, s{sT[0]}, {144*1024}
    """)
    fcols(g, sFA, sFB)
    g(f"""
    s_lshl_b32 s{sHa}, s{sFA}, 5
    s_add_u32 s{sHa}, s{sHa}, s{sT[3]}
    s_lshl_b32 s{sHb}, s{sFB}, 5
    s_add_u32 s{sHb}, s{sHb}, s{sT[3]}
    s_and_b32 s{sT[0]}, s{sC}, 3
    s_cmp_eq_u32 s{sT[0]}, 2
    s_cselect_b32 s{sUA}, 64, 0
    """)
    g("s_barrier")
    g.stamp(1)
    steps = []
    for ks in range(32):
        c, s = ks // 4, ks % 4
        slot = (c & 3) * 16384
        buf = WF + 12 * (ks & 1)
        rd = [f"ds_read_b128 {vr(XF+4*ks,4)}, v{XA[s]} offset:{slot}"]
        for u, (va, off) in enumerate(((WA1[0], 0), (WA1[1], 0), (WAV, 8192))):
            for q in range(2):
                rd.append(f"ds_read_b64_tr_b16 {vr(buf+4*u+2*q,2)}, v{va} offset:{slot+off+(16*s+4*q)*128}")
        mf = [mfma32(A[u], buf+4*u, XF+4*ks) for u in range(3)]
        steps.append(dict(reads=rd, mf=mf, newblock=(s == 0)))
    pipeline(g, steps, 1)
    g(f"buffer_load_dwordx2 {vr(vT0,2)}, v{vZ}, {sr(SDBG)}, 0 offen sc1")
    g("s_waitcnt lgkmcnt(0)\ns_barrier")
    g.stamp(2)
    def epilogue(accs, cs_offs, scales, relu, stores):
        A4 = [WF+16, WF+20]
        for t in A4:
            for j in range(1, 4): g(f"v_mov_b32 v{t+j}, 0")
        for i, a in enumerate(accs):
            t = A4[i & 1]
            g(f"ds_read_b32 v{t}, v{vCS} offset:{cs_offs[i]}")
            g("s_waitcnt lgkmcnt(0)")
            g(mfma32(a, t, B4))
        for i, a in enumerate(accs):
            for j in range(16): g(f"v_mul_f32 v{a+j}, v{scales[i]}, v{a+j}")
            for j in range(8): g(f"v_cvt_pk_bf16_f32 v{a+j}, v{a+2*j}, v{a+2*j+1}")
            if relu:
                for j in range(8): g(f"v_pk_max_i16 v{a+j}, v{a+j}, 0")
            for s in range(2):
                va, sb, imm = stores[i][s]
                g(f"s_add_u32 s{sT[15]}, s{sb}, {imm}")
                g(f"buffer_store_dwordx4 {vr(a+4*s,4)}, v{va}, {sr(SWS)}, s{sT[15]} offen sc1")
    g(f"ds_read_b64 {vr(vR,2)}, v{vST}\ns_waitcnt lgkmcnt(0)")
    g(f"v_cmp_gt_u32 vcc, 32, v0\nv_cndmask_b32 v{B4}, 0, v{vR}, vcc\nv_mov_b32 v{vR}, v{vRQ}\nv_mul_f32 v{vRQ}, s{sQS}, v{vR}")
    g(f"s_and_b32 s{sT[0]}, s{sC}, 1\ns_lshl_b32 s{sT[0]}, s{sT[0]}, 7\nv_add_u32 v{WAV}, s{sT[0]}, v{vCS}")
    A4 = [WF+16, WF+20]
    for t in A4:
        for j in range(1, 4): g(f"v_mov_b32 v{t+j}, 0")
    g(f"ds_read_b32 v{A4[0]}, v{vCS} offset:0\nds_read_b32 v{A4[1]}, v{vCS} offset:128\nds_read_b32 v{WF}, v{WAV} offset:256")
    for j in range(1, 4): g(f"v_mov_b32 v{WF+j}, 0")
    g("s_waitcnt lgkmcnt(0)")
    g(mfma32(A[0], A4[0], B4)); g(mfma32(A[1], A4[1], B4)); g(mfma32(A[2], WF, B4))
    for j in range(16): g(f"v_mov_b32 v{A[3]+j}, 0\nv_mov_b32 v{A[4]+j}, 0")
    def finish(a, scale, relu, st):
        for j in range(16): g(f"v_mul_f32 v{a+j}, v{scale}, v{a+j}")
        for j in range(8): g(f"v_cvt_pk_bf16_f32 v{a+j}, v{a+2*j}, v{a+2*j+1}")
        if relu:
            for j in range(8): g(f"v_pk_max_i16 v{a+j}, v{a+j}, 0")
        for s in range(2):
            va, sb, imm = st[s]
            g(f"s_add_u32 s{sT[15]}, s{sb}, {imm}")
            g(f"buffer_store_dwordx4 {vr(a+4*s,4)}, v{va}, {sr(SWS)}, s{sT[15]} offen sc1")
    finish(A[0], vRQ, False, [(vL16, sQK, 0), (vL16, sQK, 65536)])
    finish(A[1], vRQ, False, [(vL16, sQK, 131072), (vL16, sQK, 196608)])
    finish(A[2], vR, False, [(vLV, sV, 0), (vLV, sV, 65536)])
    g.stamp(3)
    def fsteps(accs, slot0, wa0, wa1, nunits, first_newblock):
        st = []
        for ks in range(32):
            e, s = ks // 8, ks % 8
            wa = wa1 if (e & 1) else wa0
            slot = (slot0 + (e >> 1)) * 16384
            buf = WF + 8 * (ks % 3)
            rd = []
            for u in range(nunits):
                for q in range(2):
                    rd.append(f"ds_read_b64_tr_b16 {vr(buf+4*u+2*q,2)}, v{wa[u]} offset:{slot+(16*s+4*q)*128}")
            mf = [mfma32(accs[u], buf+4*u, XF+4*ks) for u in range(nunits)]
            st.append(dict(reads=rd, mf=mf, newblock=(ks == 16 and first_newblock)))
        return st
    st = fsteps([A[3], A[4]], 0, WA0, WA1, 2, True)
    def flag_code(sflag_imm, check_nonce):
        c = ["s_waitcnt vmcnt(0)"]
        return c
    pre = []
    g2 = G(); g2.nlab = 1000
    g2("s_waitcnt vmcnt(0)")
    g2(f"v_readfirstlane_b32 s{sN0}, v{vT0}\nv_readfirstlane_b32 s{sN1}, v{vT1}")
    lok = g2.lab("nok")
    g2(f"s_cmp_lg_u32 s{sN0}, 0\ns_cbranch_scc1 {lok}")
    get_nonce(g2, vT0, vZ)
    g2(f"{lok}:")
    set_flag(g2, sFQ, vT0, vZ)
    st[10]['pre'] = [x.strip() for x in g2.L]
    pipeline(g, st, 2)
    g("s_barrier")
    g.stamp(4)
    for t in A4:
        for j in range(1, 4): g(f"v_mov_b32 v{t+j}, 0")
    g(f"ds_read_b32 v{A4[0]}, v{vCS} offset:512\nds_read_b32 v{A4[1]}, v{vCS} offset:640\ns_waitcnt lgkmcnt(0)")
    g(mfma32(A[3], A4[0], B4)); g(mfma32(A[4], A4[1], B4))
    for j in range(16): g(f"v_mov_b32 v{A[0]+j}, 0\nv_mov_b32 v{A[1]+j}, 0")
    g(f"v_xor_b32 v{WA0[0]}, s{sUA}, v{WA0[0]}\nv_xor_b32 v{WA1[0]}, s{sUA}, v{WA1[0]}")
    finish(A[3], vR, True, [(vL16, sHa, 0), (vL16, sHa, 1024)])
    finish(A[4], vR, True, [(vL16, sHa, 2048), (vL16, sHa, 3072)])
    g.stamp(5)
    g3 = G(); g3("s_waitcnt vmcnt(0)"); g3(f"s_add_u32 s{sT[14]}, s{sFQ}, {FL_T}"); set_flag(g3, sT[14], vT0, vZ)
    hapre = [x.strip() for x in g3.L]
    l1, lj = g.lab("fb1"), g.lab("fbj")
    g(f"s_and_b32 s{sT[0]}, s{sC}, 3\ns_cmp_eq_u32 s{sT[0]}, 1\ns_cbranch_scc1 {l1}\ns_cmp_eq_u32 s{sT[0]}, 2\ns_cbranch_scc1 {l1}")
    st = fsteps([A[0], A[1]], 2, WA0, WA1, 2, False); st[10]['pre'] = hapre
    pipeline(g, st, 2)
    g("s_barrier")
    for t in A4:
        for j in range(1, 4): g(f"v_mov_b32 v{t+j}, 0")
    g(f"ds_read_b32 v{A4[0]}, v{vCS} offset:768\nds_read_b32 v{A4[1]}, v{vCS} offset:896\ns_waitcnt lgkmcnt(0)")
    g(mfma32(A[0], A4[0], B4)); g(mfma32(A[1], A4[1], B4))
    finish(A[0], vR, True, [(vL16, sHb, 0), (vL16, sHb, 1024)])
    finish(A[1], vR, True, [(vL16, sHb, 2048), (vL16, sHb, 3072)])
    g(f"s_branch {lj}")
    g(f"{l1}:")
    g("s_nop 7\ns_nop 7")
    st = fsteps([A[0]], 2, WA0, WA1, 1, False); st[20]['pre'] = hapre
    pipeline(g, st, 2)
    g("s_barrier")
    for j in range(1, 4): g(f"v_mov_b32 v{A4[0]+j}, 0")
    g(f"s_lshl_b32 s{sT[0]}, s{sUA}, 1\nv_add_u32 v{WAV}, s{sT[0]}, v{vCS}")
    g(f"ds_read_b32 v{A4[0]}, v{WAV} offset:768\ns_waitcnt lgkmcnt(0)")
    g(mfma32(A[0], A4[0], B4))
    g(f"s_lshl_b32 s{sT[0]}, s{sUA}, 5\ns_add_u32 s{sHb}, s{sHb}, s{sT[0]}")
    finish(A[0], vR, True, [(vL16, sHb, 0), (vL16, sHb, 1024)])
    g(f"{lj}:")
    g.stamp(6)
    AC = [48, 64, 80, 96]
    HF = 128
    WB = 24
    vWD, vTA0, vTA1, vFL, vXR, vOA = 2, 3, 4, 5, 192, 6
    sH, sWk, sWo, sRing = sT[4], sT[5], sT[6], sT[7]
    wdma_addr(g, vWD, vT0, 1024)
    tr_addr(g, vTA0, vT0, 3)
    g(f"""
    s_and_b32 s{sT[0]}, s{sW4}, 1
    s_lshl_b32 s{sRing}, s{sT[0]}, 16
    s_lshr_b32 s{sT[0]}, s{sW4}, 1
    s_lshl_b32 s{sT[0]}, s{sT[0]}, 14
    s_add_u32 s{sRing}, s{sRing}, s{sT[0]}
    v_add_u32 v{vTA0}, s{sRing}, v{vTA0}
    v_xor_b32 v{vTA1}, 64, v{vTA0}
    s_mul_i32 s{sH}, s{sRT3}, {2*144*1024}
    s_lshl_b32 s{sT[1]}, s{sCT}, 7
    s_mul_i32 s{sWk}, s{sW4}, {448*1024}
    s_add_u32 s{sWk}, s{sWk}, s{sT[1]}
    s_lshl_b32 s{sWo}, s{sW4}, 17
    s_add_u32 s{sWo}, s{sWo}, s{sT[1]}
    """)
    g(f"""
    v_and_b32 v{vFL}, 1, v0
    v_lshlrev_b32 v{vFL}, 12, v{vFL}
    v_lshrrev_b32 v{vT0}, 1, v0
    v_lshl_add_u32 v{vFL}, v{vT0}, 7, v{vFL}
    s_lshl_b32 s{sT[0]}, s{sRT3}, 13
    s_lshl_b32 s{sT[1]}, s{sW4}, 9
    s_add_u32 s{sT[0]}, s{sT[0]}, s{sT[1]}
    s_add_u32 s{sT[0]}, s{sT[0]}, {FL_OFF + FL_T}
    v_add_u32 v{vFL}, s{sT[0]}, v{vFL}
    """)
    g(f"""
    v_and_b32 v{vOA}, 31, v0
    v_lshlrev_b32 v{vOA}, 10, v{vOA}
    v_lshrrev_b32 v{vT0}, 5, v0
    v_lshl_add_u32 v{vOA}, v{vT0}, 5, v{vOA}
    s_lshl_b32 s{sT[0]}, s{sRT3}, 16
    s_and_b32 s{sT[1]}, s{sW4}, 1
    s_lshl_b32 s{sT[1]}, s{sT[1]}, 15
    s_add_u32 s{sT[0]}, s{sT[0]}, s{sT[1]}
    s_lshl_b32 s{sT[1]}, s{sCT}, 7
    s_add_u32 s{sT[0]}, s{sT[0]}, s{sT[1]}
    s_lshr_b32 s{sT[1]}, s{sW4}, 1
    s_lshl_b32 s{sT[1]}, s{sT[1]}, 6
    s_add_u32 s{sT[0]}, s{sT[0]}, s{sT[1]}
    v_add_u32 v{vOA}, s{sT[0]}, v{vOA}
    """)
    for a in AC:
        for j in range(16): g(f"v_mov_b32 v{a+j}, 0")
    g("s_waitcnt vmcnt(0)")
    g(f"s_add_u32 s{sT[14]}, s{sFQ}, {2*FL_T}")
    set_flag(g, sT[14], vT0, vZ)
    g(f"buffer_load_dwordx4 {vr(vXR,4)}, v{vOA}, {sr(SX)}, 0 offen\nbuffer_load_dwordx4 {vr(vXR+4,4)}, v{vOA}, {sr(SX)}, 0 offen offset:16")
    g.stamp(7)
    poll(g, vFL, vT0, "0xff", "ha")
    g.stamp(8)
    NS = 36
    def ks_of(n): return (KORDER[n], False) if n < 28 else (n - 28, True)
    def hload(n):
        k, isO = ks_of(n)
        out = []
        for rt in range(2):
            if not isO: out.append(f"s_mul_i32 s{sT[13]}, s{sW4}, {28*1024}"); imm = rt*144*1024 + k*1024
            else: out.append(f"s_lshl_b32 s{sT[13]}, s{sW4}, 13"); imm = rt*144*1024 + (112+k)*1024
            out.append(f"s_add_u32 s{sT[13]}, s{sT[13]}, s{sH}\ns_add_u32 s{sT[13]}, s{sT[13]}, {imm}")
            out.append(f"buffer_load_dwordx4 {vr(HF+8*(n%8)+4*rt,4)}, v{vL16}, {sr(SWS)}, s{sT[13]} offen sc1")
        return out
    def wload(n):
        k, isO = ks_of(n)
        for hh in range(2):
            dma(g, vWD, SWO if isO else SW2, sWo if isO else sWk, (16*k+8*hh)*1024, sRing, (n%8)*2048 + hh*1024)
    def wreads(n):
        out = []
        for u, va in enumerate((vTA0, vTA1)):
            for q in range(2):
                out.append(f"ds_read_b64_tr_b16 {vr(WB+8*(n&1)+4*u+2*q,2)}, v{va} offset:{(n%8)*2048+4*q*128}")
        return out
    vq = []
    for n in range(8):
        for x in hload(n): g(x)
        vq += [('h', n)] * 2
    for r in wreads(0): g(r)
    for n in range(NS):
        def wait_for(tags):
            idx = max((i for i, t in enumerate(vq) if t in tags), default=-1)
            if idx >= 0:
                g(f"s_waitcnt vmcnt({len(vq)-1-idx})")
        wait_for({('h', n), ('w', n+1)})
        if n + 1 < NS:
            for r in wreads(n+1): g(r)
            g("s_waitcnt lgkmcnt(4)")
        else:
            g("s_waitcnt lgkmcnt(0)")
        for u in range(2):
            for rt in range(2):
                g(mfma32(AC[2*u+rt], WB+8*(n&1)+4*u, HF+8*(n%8)+4*rt))
        m = n + 8
        if m < NS:
            wload(m); vq += [('w', m)] * 2
            if m == 16:
                g(f"v_add_u32 v{vFL}, {FL_T}, v{vFL}")
                poll(g, vFL, vT0, "0xff", "hb"); vq.clear()
                g.stamp(9)
            if m == 28:
                g(f"s_lshl_b32 s{sT[0]}, s{sW4}, 9\ns_add_u32 s{sT[0]}, s{sT[0]}, {FL_T}\nv_add_u32 v{vFL}, s{sT[0]}, v{vFL}")
                g.stamp(10)
                poll(g, vFL, vT0, "0xffff", "o"); vq.clear()
                g.stamp(11)
            for x in hload(m): g(x)
            vq += [('h', m)] * 2
    g.stamp(12)
    g(f"v_add_u32 v{vT0}, s{sRing}, v{vL16}\ns_nop 11")
    for qd in range(4):
        ls = g.lab("rw")
        g(f"s_cmp_eq_u32 s{sW4}, {qd}\ns_cbranch_scc1 {ls}")
        for j in range(4):
            g(f"ds_write_b128 v{vT0}, {vr(AC[qd]+4*j,4)} offset:{qd*4096+j*1024}")
        g(f"{ls}:")
    g("s_waitcnt lgkmcnt(0)\ns_barrier")
    OWN = 112
    for qd in range(4):
        ls = g.lab("mv")
        g(f"s_cmp_lg_u32 s{sW4}, {qd}\ns_cbranch_scc1 {ls}")
        for j in range(16): g(f"v_mov_b32 v{OWN+j}, v{AC[qd]+j}")
        g(f"{ls}:")
    g(f"s_lshl_b32 s{sT[0]}, s{sW4}, 12\nv_add_u32 v{vT0}, s{sT[0]}, v{vL16}\nv_add_u32 v{vT1}, {W1}, v{vT0}")
    g(f"v_add_u32 v{vT0}, s{sRing}, v{vL16}\nv_add_u32 v{vT0}, s{sT[0]}, v{vT0}")
    for i, xr in enumerate((65536, 16384, 65536 + 16384)):
        g(f"v_xor_b32 v{vT1}, {xr}, v{vT0}")
        for j in range(4):
            g(f"ds_read_b128 {vr(128+16*i+4*j,4)}, v{vT1} offset:{j*1024}")
    g("s_waitcnt lgkmcnt(0) vmcnt(0)")
    for j in range(16):
        g(f"v_add_f32 v{OWN+j}, v{OWN+j}, v{128+j}\nv_add_f32 v{144+j}, v{144+j}, v{160+j}")
    for j in range(8):
        g(f"v_lshlrev_b32 v{176+2*j}, 16, v{vXR+j}\nv_and_b32 v{177+2*j}, 0xffff0000, v{vXR+j}")
    for j in range(16):
        g(f"v_add_f32 v{OWN+j}, v{OWN+j}, v{144+j}")
    for j in range(16):
        g(f"v_add_f32 v{OWN+j}, v{OWN+j}, v{176+j}")
    for j in range(8): g(f"v_cvt_pk_bf16_f32 v{OWN+j}, v{OWN+2*j}, v{OWN+2*j+1}")
    g(f"buffer_store_dwordx4 {vr(OWN,4)}, v{vOA}, {sr(SOUT)}, 0 offen\nbuffer_store_dwordx4 {vr(OWN+4,4)}, v{vOA}, {sr(SOUT)}, 0 offen offset:16")
    g.stamp(13)
    g.dump_stamps(200)
    g("s_endpgm")

def build_H(g):
    vXe, vXo, vWq, vW1, vW2 = 2, 3, 4, 5, 6
    vXA = [7, 8]; vCA = 9; vCF0, vCF1 = 10, 11; vZ = 12; vT0, vT1 = 14, 15
    vSTw, vCSw = 16, 17
    ONE = 20
    XB = 24
    WBf = 40
    DS = [56, 60]; DQ = [64, 68]; DC = [72, 76]
    sXrow, sS0, sS1, sF2, sF3, sW2b, sL4, sL2 = sT[4], sT[5], sT[6], sT[7], sT[8], sT[9], sT[10], sT[11]
    sM1, sM2, sM3, sMV = 86, 88, 90, 92
    sM1, sM2, sM3, sMV = 10, 22, pQ, pW1
    g(f"v_and_b32 v{vXe}, 7, v0\nv_lshrrev_b32 v{vT0}, 4, v0\nv_xor_b32 v{vXe}, v{vXe}, v{vT0}\nv_lshlrev_b32 v{vXe}, 4, v{vXe}")
    g(f"v_lshrrev_b32 v{vT0}, 3, v0\nv_lshl_add_u32 v{vXe}, v{vT0}, 10, v{vXe}\nv_xor_b32 v{vXo}, 64, v{vXe}")
    wdma_addr(g, vWq, vT0, 3072)
    g(f"""
    s_lshl_b32 s{sXrow}, s{sRB}, 17
    s_lshl_b32 s{sT[0]}, s{sW4}, 15
    s_add_u32 s{sXrow}, s{sXrow}, s{sT[0]}
    s_mul_i32 s{sS1}, s{sW4}, {16*3072}
    s_lshl_b32 s{sT[0]}, s{sJJ}, 7
    s_add_u32 s{sS1}, s{sS1}, s{sT[0]}
    s_and_b32 s{sT[0]}, s{sC}, 1
    s_lshl_b32 s{sT[0]}, s{sT[0]}, 10
    s_add_u32 s{sS0}, s{sS1}, s{sT[0]}
    s_add_u32 s{sS1}, s{sS1}, 2048
    s_lshl_b32 s{sL4}, s{sW4}, 12
    s_lshl_b32 s{sL2}, s{sW4}, 11
    s_waitcnt lgkmcnt(0)
    """)
    if g.diag: g(f"s_mov_b32 s{sSTAMP}, s100")
    srd(g, SX, pX, 2048*1024); srd(g, SQ, pQ, 512*3072)
    def grpQ(c):
        slot = (c & 3) * 16384
        out = []
        for ii in range(4):
            out.append(lambda ii=ii: dma(g, vXo if ii & 1 else vXe, SX, sXrow, ii*8192 + c*128, sL4, W0 + slot + ii*1024))
        for sl, sb in enumerate((sS0, sS1)):
            for ii in range(2):
                out.append(lambda sl=sl, sb=sb, ii=ii: dma(g, vWq, SQ, sb, (64*c + 8*ii)*3072, sL2, W1 + slot + sl*8192 + ii*1024))
        return out
    def grpF(sb, e0, slot):
        out = []
        for e in (e0, e0 + 1):
            for ii in range(4):
                out.append(lambda e=e, ii=ii: dma(g, vW1, SW1, sb, (128*e + 8*ii)*3584, sL4, (W1 if e & 1 else W0) + slot*16384 + ii*1024))
        return out
    def grpW2(kq0):
        out = []
        for kq in (kq0, kq0 + 1):
            for ii in range(4):
                out.append(lambda kq=kq, ii=ii: dma(g, vW2, SW2, sW2b, (448*kq + 8*ii)*1024, sL4, RING[kq] + ii*1024))
        return out
    for c in range(4):
        for f in grpQ(c): f()
    srd(g, SW1, pW1, 512*3584); srd(g, SW2, pW2, 1792*1024); srd(g, SWS, pWS, WS_USED); srd(g, SDBG, pDBG, 256)
    g(f"v_mov_b32 v{vZ}, 0")
    wdma_addr(g, vW1, vT0, 3584); wdma_addr(g, vW2, vT0, 1024)
    fcols(g, sF2, sF3)
    g(f"""
    s_mul_i32 s{sT[0]}, s{sW4}, {32*3584}
    s_add_u32 s{sF2}, s{sF2}, s{sT[0]}
    s_add_u32 s{sF3}, s{sF3}, s{sT[0]}
    s_lshr_b32 s{sT[0]}, s{sW4}, 1
    s_lshl_b32 s{sT[0]}, s{sT[0]}, 16
    s_lshl_b32 s{sW2b}, s{sW4}, 15
    s_add_u32 s{sW2b}, s{sW2b}, s{sT[0]}
    s_lshl_b32 s{sT[0]}, s{sCT}, 7
    s_add_u32 s{sW2b}, s{sW2b}, s{sT[0]}
    """)
    g(f"""
    v_and_b32 v{vT0}, 15, v0
    s_lshl_b32 s{sT[0]}, s{sW4}, 5
    v_add_u32 v{vSTw}, s{sT[0]}, v{vT0}
    v_lshlrev_b32 v{vXA[0]}, 7, v{vSTw}
    v_lshlrev_b32 v{vSTw}, 3, v{vSTw}
    v_add_u32 v{vSTw}, {L_ST}, v{vSTw}
    v_lshrrev_b32 v{vT1}, 1, v{vT0}
    v_lshrrev_b32 v{vCA}, 4, v0
    v_xor_b32 v{vT1}, v{vT1}, v{vCA}
    v_lshl_add_u32 v{vXA[0]}, v{vT1}, 4, v{vXA[0]}
    v_xor_b32 v{vXA[1]}, 64, v{vXA[0]}
    """)
    g(f"""
    v_lshlrev_b32 v{vCA}, 10, v{vCA}
    v_bfe_u32 v{vT1}, v0, 2, 2
    v_lshl_add_u32 v{vCA}, v{vT1}, 7, v{vCA}
    v_bfe_u32 v{vT1}, v0, 3, 1
    v_lshl_add_u32 v{vCA}, v{vT1}, 6, v{vCA}
    v_and_b32 v{vT1}, 3, v0
    v_lshl_add_u32 v{vCA}, v{vT1}, 3, v{vCA}
    """)
    g(f"""
    s_lshr_b32 s{sT[0]}, s{sW4}, 1
    s_lshl_b32 s{sT[0]}, s{sT[0]}, 6
    v_xor_b32 v{vCF0}, s{sT[0]}, v{vCA}
    s_and_b32 s{sT[1]}, s{sW4}, 1
    s_lshl_b32 s{sT[1]}, s{sT[1]}, 5
    v_add_u32 v{vCF0}, s{sT[1]}, v{vCF0}
    v_add_u32 v{vCF1}, {W1}, v{vCF0}
    """)
    g(f"""
    s_and_b32 s{sT[1]}, s{sW4}, 1
    s_lshl_b32 s{sT[1]}, s{sT[1]}, 6
    v_xor_b32 v{vCA}, s{sT[1]}, v{vCA}
    s_lshr_b32 s{sT[0]}, s{sW4}, 1
    s_lshl_b32 s{sT[0]}, s{sT[0]}, 13
    s_add_u32 s{sT[0]}, s{sT[0]}, {W1}
    v_add_u32 v{vCA}, s{sT[0]}, v{vCA}
    v_lshlrev_b32 v{vCSw}, 2, v{vT0}
    v_add_u32 v{vCSw}, {L_CS}, v{vCSw}
    v_and_b32 v{vT1}, 3, v0
    v_cmp_eq_u32 s[{sM1}:{sM1+1}], 1, v{vT1}
    v_cmp_eq_u32 s[{sM2}:{sM2+1}], 2, v{vT1}
    v_cmp_eq_u32 s[{sM3}:{sM3+1}], 3, v{vT1}
    v_lshrrev_b32 v{vT1}, 2, v{vT0}
    v_lshrrev_b32 v{vT0}, 4, v0
    v_cmp_eq_u32 s[{sMV}:{sMV+1}], v{vT0}, v{vT1}
    """)
    for j in range(4): g(f"v_mov_b32 v{ONE+j}, 0x3f803f80")
    for a in DS + DQ + DC:
        for j in range(4): g(f"v_mov_b32 v{a+j}, 0")
    g("s_waitcnt vmcnt(24)\ns_barrier")
    g.stamp(1)
    def cs_write(d, off_code):
        g(f"v_cvt_pk_bf16_f32 v{vT0}, v{d}, v{d}\nv_and_b32 v{vT0}, 0xffff0000, v{vT0}\nv_sub_f32 v{vT1}, v{d}, v{vT0}\nv_cvt_pk_bf16_f32 v{vT0}, v{vT0}, v{vT1}")
        off_code()
    groups = {1: grpQ(4), 2: grpQ(5), 3: grpQ(6), 4: grpQ(7), 5: grpF(sF2, 0, 0), 6: grpF(sF2, 2, 1), 7: grpF(sF3, 0, 2)}
    for c in range(8):
        slot = (c & 3) * 16384
        for rt in range(2):
            for s2 in range(2):
                g(f"ds_read_b128 {vr(XB+8*rt+4*s2,4)}, v{vXA[s2]} offset:{slot+rt*2048}")
        for t in range(2):
            for s2 in range(2):
                for q in range(2):
                    g(f"ds_read_b64_tr_b16 {vr(WBf+8*t+4*s2+2*q,2)}, v{vCA} offset:{slot+t*32+(32*s2+4*q)*128}")
        dm = list(groups.get(c, []))
        mfs = []
        for s2 in range(2):
            for rt in range(2):
                mfs.append(mfma16(DS[rt], ONE, XB+8*rt+4*s2)); mfs.append(mfma16(DQ[rt], XB+8*rt+4*s2, XB+8*rt+4*s2))
        for s2 in range(2):
            for t in range(2):
                mfs.append(mfma16(DC[t], ONE, WBf+8*t+4*s2))
        late = (c == 7)
        if dm and not late: dm.pop(0)(); dm.pop(0)()
        g("s_waitcnt lgkmcnt(8)")
        for i, m in enumerate(mfs):
            if i == 8: g("s_waitcnt lgkmcnt(0)")
            g(m)
            if dm and not late and i % 2 == 1: dm.pop(0)()
        if c == 7:
            for rt in range(2):
                q = DQ[rt]; sm = DS[rt]
                g(f"v_cndmask_b32 v{q}, v{q}, v{q+1}, s[{sM1}:{sM1+1}]\nv_cndmask_b32 v{q}, v{q}, v{q+2}, s[{sM2}:{sM2+1}]\nv_cndmask_b32 v{q}, v{q}, v{q+3}, s[{sM3}:{sM3+1}]")
                g(f"v_mul_f32 v{sm}, 0x3b000000, v{sm}\nv_mul_f32 v{q}, 0x3b000000, v{q}\nv_fma_f32 v{q}, -v{sm}, v{sm}, v{q}\nv_max_f32 v{q}, 0, v{q}")
                g(f"v_cvt_pk_bf16_f32 v{sm+2}, -v{sm}, -v{sm}")
                g(f"v_cvt_pk_bf16_f32 v{q}, v{q}, v{q}\nv_and_b32 v{q}, 0xffff0000, v{q}\nv_add_f32 v{q}, 0x3727c5ac, v{q}")
                g(f"v_cvt_pk_bf16_f32 v{q}, v{q}, v{q}\nv_and_b32 v{q}, 0xffff0000, v{q}\nv_sqrt_f32 v{q}, v{q}")
                g(f"v_cvt_pk_bf16_f32 v{q}, v{q}, v{q}\nv_and_b32 v{q}, 0xffff0000, v{q}\nv_rcp_f32 v{sm+3}, v{q}")
                g(f"s_mov_b64 exec, s[{sMV}:{sMV+1}]\ns_nop 0\nds_write_b64 v{vSTw}, {vr(sm+2,2)} offset:{rt*128}\ns_mov_b64 exec, -1")
            g(f"s_lshl_b32 s{sT[0]}, s{sW4}, 7\nv_add_u32 v{XB}, s{sT[0]}, v{vCSw}")
            for t in range(2):
                cs_write(DC[t], lambda t=t: g(f"ds_write_b32 v{XB}, v{vT0} offset:{t*64}"))
            for j in range(4): g(f"v_mov_b32 v{DC[0]+j}, 0")
            g("s_waitcnt lgkmcnt(0)")
        while dm: dm.pop(0)()
        g("s_waitcnt vmcnt(16)\ns_barrier")
    g.stamp(2)
    def fblock(e, slot):
        va = vCF1 if e & 1 else vCF0
        for s2 in range(4):
            for q in range(2):
                g(f"ds_read_b64_tr_b16 {vr(WBf+4*s2+2*q,2)}, v{va} offset:{slot*16384+(32*s2+4*q)*128}")
    def fmf():
        g("s_waitcnt lgkmcnt(0)")
        for s2 in range(4): g(mfma16(DC[0], ONE, WBf+4*s2))
    def finterval(e0, slot, dm):
        for e in (e0, e0+1):
            fblock(e, slot)
            for _ in range(4):
                if dm: dm.pop(0)()
            fmf()
    g(f"s_lshl_b32 s{sT[0]}, s{sW4}, 6\nv_add_u32 v{XB}, s{sT[0]}, v{vCSw}")
    finterval(0, 0, grpF(sF3, 2, 3))
    g("s_waitcnt vmcnt(16)\ns_barrier")
    finterval(2, 1, grpW2(0))
    cs_write(DC[0], lambda: g(f"ds_write_b32 v{XB}, v{vT0} offset:512"))
    for j in range(4): g(f"v_mov_b32 v{DC[0]+j}, 0")
    g("s_waitcnt vmcnt(8) lgkmcnt(0)\ns_barrier")
    g.stamp(4)
    finterval(0, 2, grpW2(2))
    finterval(2, 3, [])
    cs_write(DC[0], lambda: g(f"ds_write_b32 v{XB}, v{vT0} offset:768"))
    get_nonce(g, vT0, vZ)
    g("s_waitcnt vmcnt(0) lgkmcnt(0)\ns_barrier")
    g.stamp(6)
    vL16, vFL, vKA, vVA, vInc, vQ, vM, vM2 = 2, 3, 4, 5, 6, 8, 16, 17
    vZ2 = 7
    g(f"v_mov_b32 v{vZ2}, 0")
    vQ = 24
    KF = 32
    BD, BO = 72, 88
    MK = 104
    NM = 112
    S = [128, 144]
    VF = [160, 168]
    O = 176
    vT0, vT1 = 18, 19
    sHead, sRT0, sSrc, sLd, sNV, sO, sFO = sT[4], sT[5], sT[6], sT[7], sT[8], sT[9], sT[10]
    sEX = 10
    g(f"""
    v_lshlrev_b32 v{vL16}, 4, v0
    s_and_b32 s{sT[0]}, s{sW4}, 1
    s_lshl_b32 s{sHead}, s{sC}, 1
    s_add_u32 s{sHead}, s{sHead}, s{sT[0]}
    s_lshr_b32 s{sT[1]}, s{sW4}, 1
    s_lshl_b32 s{sRT0}, s{sRB}, 2
    s_lshl_b32 s{sT[2]}, s{sT[1]}, 1
    s_add_u32 s{sRT0}, s{sRT0}, s{sT[2]}
    s_lshl_b32 s{sSrc}, s{sT[1]}, 21
    s_add_u32 s{sSrc}, s{sSrc}, {KF_OFF - 8192}
    s_lshl_b32 s{sT[2]}, s{sHead}, 16
    s_add_u32 s{sSrc}, s{sSrc}, s{sT[2]}
    s_lshl_b32 s{sT[3]}, s{sRB}, 12
    s_add_u32 s{sSrc}, s{sSrc}, s{sT[3]}
    s_lshl_b32 s{sLd}, s{sT[1]}, 16
    s_mul_i32 s{sT[3]}, s{sT[0]}, 12288
    s_add_u32 s{sLd}, s{sLd}, s{sT[3]}
    s_add_u32 s{sLd}, s{sLd}, {L_K}
    s_lshl_b32 s{sT[3]}, s{sJJ}, 1
    s_add_u32 s{sT[12]}, s{sT[3]}, 1
    s_cmp_eq_u32 s{sT[1]}, 0
    s_cselect_b32 s{sT[12]}, s{sT[12]}, s{sC}
    s_lshl_b32 s{sT[13]}, s{sRB}, 2
    s_sub_u32 s{sT[13]}, s{sT[13]}, 8
    v_add_u32 v{vFL}, s{sT[13]}, v0
    v_lshlrev_b32 v{vFL}, 5, v{vFL}
    v_add_u32 v{vFL}, s{sT[12]}, v{vFL}
    s_sub_u32 s{sT[13]}, s{sRT0}, 12
    v_add_u32 v{vT0}, s{sT[13]}, v0
    v_lshlrev_b32 v{vT0}, 5, v{vT0}
    v_add_u32 v{vT0}, s{sT[3]}, v{vT0}
    v_cmp_gt_u32 vcc, 12, v0
    v_cndmask_b32 v{vFL}, v{vT0}, v{vFL}, vcc
    v_lshlrev_b32 v{vFL}, 7, v{vFL}
    v_add_u32 v{vFL}, {FL_OFF}, v{vFL}
    s_lshl_b32 s{sT[13]}, s{sRB}, 2
    s_sub_i32 s{sT[13]}, 8, s{sT[13]}
    s_max_i32 s{sT[13]}, s{sT[13]}, 0
    s_lshl_b32 s{sEX}, 0x3fff, s{sT[13]}
    s_and_b32 s{sEX}, s{sEX}, 0x3fff
    s_mov_b32 s{sEX+1}, 0
    """)
    g(f"v_and_b32 v{vT0}, 31, v0\nv_lshrrev_b32 v{vT1}, 5, v0\nv_lshlrev_b32 v{vT1}, 2, v{vT1}\nv_sub_u32 v{vT0}, v{vT0}, v{vT1}\nv_mov_b32 v{vT1}, 0xff800000")
    for r in range(16):
        k0 = (r & 3) + 8 * (r >> 2)
        g(f"v_cmp_gt_i32 vcc, {k0}, v{vT0}\nv_cndmask_b32 v{BD+r}, 0, v{vT1}, vcc\nv_cndmask_b32 v{BO+r}, v{vT1}, 0, vcc")
    for d in range(8):
        g(f"v_ashrrev_i32 v{vM}, 31, v{BO+2*d}\nv_ashrrev_i32 v{vM2}, 31, v{BO+2*d+1}\nv_and_b32 v{vM}, 0xffff, v{vM}\nv_and_b32 v{vM2}, 0xffff0000, v{vM2}\nv_or_b32 v{MK+d}, v{vM}, v{vM2}")
    g(f"""
    s_and_b32 s{sT[0]}, s{sW4}, 1
    s_mul_i32 s{sT[0]}, s{sT[0]}, 12288
    s_lshr_b32 s{sT[1]}, s{sW4}, 1
    s_lshl_b32 s{sT[1]}, s{sT[1]}, 11
    s_add_u32 s{sT[0]}, s{sT[0]}, s{sT[1]}
    s_add_u32 s{sT[1]}, s{sT[0]}, {L_K}
    v_add_u32 v{vKA}, s{sT[1]}, v{vL16}
    s_add_u32 s{sT[11]}, s{sT[0]}, {L_V}
    """)
    g.stamp(7)
    poll(g, vFL, vT0, f"s[{sEX}:{sEX+1}]", "qkv")
    g.stamp(8)
    for t in range(12):
        dma(g, vL16, SWS, sSrc, t*1024, sLd, t*1024, "sc1")
    g(f"""
    s_lshl_b32 s{sT[0]}, s{sHead}, 6
    s_add_u32 s{sT[0]}, s{sT[0]}, s{sRT0}
    s_lshl_b32 s{sT[0]}, s{sT[0]}, 10
    s_add_u32 s{sT[0]}, s{sT[0]}, {QF_OFF}
    buffer_load_dwordx4 {vr(vQ,4)}, v{vL16}, {sr(SWS)}, s{sT[0]} offen sc1
    buffer_load_dwordx4 {vr(vQ+4,4)}, v{vL16}, {sr(SWS)}, s{sT[0]} offen offset:1024 sc1
    s_mul_i32 s{sO}, s{sRT0}, {144*1024}
    s_lshl_b32 s{sT[0]}, s{sHead}, 10
    s_add_u32 s{sO}, s{sO}, s{sT[0]}
    s_add_u32 s{sO}, s{sO}, {HO_OFF + 112*1024}
    s_lshl_b32 s{sFO}, s{sRT0}, 5
    s_add_u32 s{sFO}, s{sFO}, s{sHead}
    s_lshl_b32 s{sFO}, s{sFO}, 7
    s_add_u32 s{sFO}, s{sFO}, {FL_OFF + 3*FL_T}
    """)
    vVB = 20
    g(f"""
    v_lshrrev_b32 v{vT0}, 5, v0
    v_lshlrev_b32 v{vVB}, 7, v{vT0}
    v_bfe_u32 v{vT1}, v0, 2, 2
    v_lshl_add_u32 v{vVB}, v{vT1}, 5, v{vVB}
    v_bfe_u32 v{vT1}, v0, 0, 1
    v_lshl_add_u32 v{vVB}, v{vT1}, 4, v{vVB}
    v_bfe_u32 v{vT1}, v0, 1, 1
    v_lshl_add_u32 v{vVB}, v{vT1}, 3, v{vVB}
    v_add_u32 v{vVB}, s{sT[11]}, v{vVB}
    v_xor_b32 v{vT0}, 1, v{vT0}
    v_lshlrev_b32 v{vT0}, 7, v{vT0}
    v_and_b32 v{vT1}, 15, v0
    v_lshl_add_u32 v{vT0}, v{vT1}, 3, v{vT0}
    v_add_u32 v{vT0}, {L_ONES}, v{vT0}
    v_bfe_u32 v{vT1}, v0, 4, 1
    v_cmp_eq_u32 vcc, 0, v{vT1}
    v_cndmask_b32 v{vVB}, v{vT0}, v{vVB}, vcc
    v_mov_b32 v{vT0}, 1024
    v_cndmask_b32 v{vInc}, 0, v{vT0}, vcc
    v_mov_b32 v{vT0}, {L_CNT}
    v_mov_b32 v{vT1}, 1
    s_waitcnt vmcnt(0)
    s_mov_b64 exec, 1
    ds_add_u32 v{vT0}, v{vT1}
    s_mov_b64 exec, -1
    s_mov_b32 s{sSPIN}, 0
    """)
    lp, ld = g.lab("cnt"), g.lab("cntd")
    g(f"{lp}:\nds_read_b32 v{vT1}, v{vT0}\ns_add_u32 s{sSPIN}, s{sSPIN}, 1\ns_waitcnt lgkmcnt(0)\nv_readfirstlane_b32 s{sT[0]}, v{vT1}")
    g(f"s_cmp_gt_u32 s{sSPIN}, {SPIN_MAX*20}\ns_cbranch_scc1 {ld}\ns_cmp_lt_u32 s{sT[0]}, 4\ns_cbranch_scc1 {lp}\n{ld}:")
    g.stamp(9)
    for n in range(10):
        g(f"ds_read_b128 {vr(KF+4*n,4)}, v{vKA} offset:{(9-n)*1024}")
    g("s_waitcnt lgkmcnt(0)")
    for un in range(2):
        k0 = 1 - un
        Q = vQ + 4*un
        g(f"s_add_u32 s{sNV}, s{sRT0}, {un+1}\ns_min_u32 s{sNV}, s{sNV}, 9")
        g(f"v_mul_u32_u24 v{vVA}, {9-k0}, v{vInc}\nv_add_u32 v{vVA}, v{vVA}, v{vVB}")
        def vreads(n):
            for s in range(2):
                for q in range(2):
                    g(f"ds_read_b64_tr_b16 {vr(VF[n&1]+4*s+2*q,2)}, v{vVA} offset:{(16*s+8*q)*32}")
            g(f"v_sub_u32 v{vVA}, v{vVA}, v{vInc}")
        vreads(0)
        p1 = g.lab("p1")
        def cb(n): return BD if n == 0 else (BO if n == 8 else "0")
        g(mfma32(S[0], KF+4*k0, Q, cb(0)))
        for n in range(9):
            if n + 1 < 9: g(mfma32(S[(n+1)&1], KF+4*(k0+n+1), Q, cb(n+1)))
            if n > 0: g(f"s_cmp_le_u32 s{sNV}, {n}\ns_cbranch_scc1 {p1}")
            s = S[n&1]
            if n == 0:
                g(f"v_max_f32 v{vM}, v{s}, v{s+1}")
                for j in range(1, 8): g(f"v_max3_f32 v{vM}, v{s+2*j}, v{s+2*j+1}, v{vM}")
            else:
                for j in range(8): g(f"v_max3_f32 v{vM}, v{s+2*j}, v{s+2*j+1}, v{vM}")
        g(f"{p1}:")
        g(f"v_mov_b32 v{vM2}, v{vM}\ns_nop 1\nv_permlane32_swap_b32 v{vM}, v{vM2}\nv_max_f32 v{vM}, v{vM}, v{vM2}")
        for j in range(16): g(f"v_sub_f32 v{NM+j}, 0, v{vM}")
        g("s_nop 7")
        p2 = g.lab("p2")
        g(mfma32(S[0], KF+4*k0, Q, NM))
        for n in range(9):
            if n > 0: g(f"s_cmp_le_u32 s{sNV}, {n}\ns_cbranch_scc1 {p2}")
            if n + 1 < 9:
                g(mfma32(S[(n+1)&1], KF+4*(k0+n+1), Q, NM))
                vreads(n+1)
            s = S[n&1]
            for j in range(16): g(f"v_exp_f32 v{s+j}, v{s+j}")
            for j in range(8): g(f"v_cvt_pk_bf16_f32 v{s+j}, v{s+2*j}, v{s+2*j+1}")
            if n == 0:
                for j in range(8): g(f"v_and_b32 v{s+j}, v{s+j}, v{MK+j}")
            if n == 8:
                for j in range(8): g(f"v_bfi_b32 v{s+j}, v{MK+j}, 0, v{s+j}")
            g(f"s_waitcnt lgkmcnt({4 if n + 1 < 9 else 0})")
            g(mfma32(O, VF[n&1], s, "0" if n == 0 else None))
            g(mfma32(O, VF[n&1]+4, s+4))
        g(f"{p2}:")
        g("s_nop 11\ns_waitcnt lgkmcnt(0)")
        g(f"v_rcp_f32 v{vM}, v{O+8}")
        for j in range(8): g(f"v_mul_f32 v{O+j}, v{O+j}, v{vM}")
        for j in range(4): g(f"v_cvt_pk_bf16_f32 v{O+j}, v{O+2*j}, v{O+2*j+1}")
        g(f"s_add_u32 s{sT[0]}, s{sO}, {un*144*1024}")
        g(f"buffer_store_dwordx4 {vr(O,4)}, v{vL16}, {sr(SWS)}, s{sT[0]} offen sc1")
        if un == 1:
            g("s_waitcnt vmcnt(0)")
            set_flag(g, sFO, vT0, vZ2)
            g(f"s_add_u32 s{sFO}, s{sFO}, 4096")
            set_flag(g, sFO, vT0, vZ2)
        g.stamp(10 + un)
    g("s_barrier")
    g.dump_stamps(200, 'H')
    g("s_endpgm")

HEADER = open("parallel_sum__sliding_block__dense_activation_relu__prompt.s.ref").read().split("; Override")[0]
def emit(path, **kw):
    g = build(**kw)
    lines, added = hz.fix(g.L)
    txt = HEADER + f"; @launch grid=(256,1,1) block=(512,1,1) lds={LDS_TOTAL}\n" + f""".amdgcn_target "amdgcn-amd-amdhsa--gfx950"
.text
.globl {KNAME}
.p2align 8
.type {KNAME},@function
{KNAME}:
""" + "\n".join(lines) + f"""
    s_endpgm
.section .rodata,"a"
.p2align 6
.amdhsa_kernel {KNAME}
  .amdhsa_next_free_vgpr 256
  .amdhsa_next_free_sgpr 102
  .amdhsa_accum_offset 256
  .amdhsa_group_segment_fixed_size 0
  .amdhsa_kernarg_size 72
  .amdhsa_user_sgpr_count 2
  .amdhsa_user_sgpr_kernarg_segment_ptr 1
  .amdhsa_system_sgpr_workgroup_id_x 1
.end_amdhsa_kernel
"""
    open(path, "w").write(txt)
    print(f"wrote {path}: {len(lines)} lines, {added} nops added")
if __name__ == "__main__":
    ap = argparse.ArgumentParser()
    ap.add_argument("-o", default="parallel_sum__sliding_block__dense_activation_relu__prompt.s")
    ap.add_argument("--diag", type=int, default=0)
    a = ap.parse_args()
    emit(a.o, diag=a.diag)
```
